```python
import torch

def _softmax(x, axis=-1):
    return torch.softmax(x, dim=axis)
def _gelu(x):
    return torch.nn.functional.gelu(x, approximate="tanh")
def _silu(x):
    return torch.nn.functional.silu(x)
def _sigmoid(x):
    return torch.sigmoid(x)
def _layernorm(x, axis=-1, eps=1e-5):
    m = x.mean(dim=axis, keepdim=True)
    v = x.var(dim=axis, keepdim=True, unbiased=False)
    return (x - m) / torch.sqrt(v + eps)
def _scatter_add(tgt, idx, src, axis=0):
    return tgt.clone().index_add_(axis, idx, src)
def _segment_sum(src, seg, n):
    out = torch.zeros((n,) + src.shape[1:], dtype=src.dtype)
    return out.index_add_(0, seg, src)
def _pad(x, pw):
    flat = tuple(v for pair in reversed(pw) for v in pair)
    return torch.nn.functional.pad(x, flat)

kernel_name = 'standalone__edge_featured_mpnn_egc__graph'

def setup_inputs():

    _w = (lambda a: (lambda t: t.to(torch.bfloat16) if t.is_floating_point() else t)(torch.as_tensor(a)))
    N, deg, D, De = 12500, 64, 64, max(0, 1)
    E = N * deg
    return {
        "x": _w((lambda *s: torch.randn(*s, dtype=torch.bfloat16) * 0.2)(N, D)),
        "e_attr": _w((lambda *s: torch.randn(*s, dtype=torch.bfloat16) * 0.2)(E, De)),
        "src": _w((lambda lo, hi, *s: torch.randint(lo, hi, s))(0, N, E).to(torch.int64)),
        "dst": _w((lambda lo, hi, *s: torch.randint(lo, hi, s))(0, N, E).to(torch.int64)),
        "u_w": _w((lambda *s: torch.randn(*s, dtype=torch.bfloat16) * 0.05)(D, D)),
        "v_w": _w((lambda *s: torch.randn(*s, dtype=torch.bfloat16) * 0.05)(D, D)),
        "g_w": _w((lambda *s: torch.randn(*s, dtype=torch.bfloat16) * 0.2)(2 * D + De, D)),
    }

def reference(x, e_attr, src, dst, u_w, v_w, g_w):
    N, D = x.shape
    g_in = torch.concatenate([x[dst], x[src], e_attr], axis=-1)
    eta = _sigmoid(g_in @ g_w)
    hv = x @ v_w
    msg = eta * hv[src]
    agg = _segment_sum(msg, dst, N)
    return _silu(x @ u_w + agg)
```

```python
import sys

N = 12500
E = 800000
NB = 256
BN = 49
PW = 250
CH = 3200
GW = 196
ROWS = 12544
KSEG = 48
T_OFF = 0
A_OFF = 4 << 20
U_OFF = 8 << 20
REC_OFF = 12 << 20
OFFT_OFF = 20 << 20
NLOG2E = 0xbfb8aa3b

out = []
def o(s=""):
    out.append(s)

def srd(d, lo, hi, size):
    o(f"  s_mov_b32 s{d}, s{lo}")
    o(f"  s_and_b32 s{d+1}, s{hi}, 0xffff")
    o(f"  s_mov_b32 s{d+2}, {size}")
    o(f"  s_mov_b32 s{d+3}, 0x00020000")

def srd_off(d, lo, hi, off, size):
    o(f"  s_add_u32 s{d}, s{lo}, {off}")
    o(f"  s_addc_u32 s{d+1}, s{hi}, 0")
    o(f"  s_and_b32 s{d+1}, s{d+1}, 0xffff")
    o(f"  s_mov_b32 s{d+2}, {size}")
    o(f"  s_mov_b32 s{d+3}, 0x00020000")

def wave_scan(v, tmp=None):
    for sh in (1, 2, 4, 8):
        o("  s_nop 1")
        o(f"  v_add_u32_dpp v{v}, v{v}, v{v} row_shr:{sh} row_mask:0xf bank_mask:0xf")
    o("  s_nop 1")
    o(f"  v_add_u32_dpp v{v}, v{v}, v{v} row_bcast:15 row_mask:0xa bank_mask:0xf")
    o("  s_nop 1")
    o(f"  v_add_u32_dpp v{v}, v{v}, v{v} row_bcast:31 row_mask:0xc bank_mask:0xf")
    o("  s_nop 1")

K2_LDS = 128 * 1024
K1_LDS = 32 * 1024
o(f"; @launch kernel=mpnn_k1_kernel grid=({PW+GW},1,1) block=(256,1,1) lds={K1_LDS}")
o(f"; @launch kernel=mpnn_k2_kernel grid=({NB},1,1) block=(1024,1,1) lds={K2_LDS}")
o('.amdgcn_target "amdgcn-amd-amdhsa--gfx950"')
o(".text")

o(".globl mpnn_k1_kernel")
o(".p2align 8")
o(".type mpnn_k1_kernel,@function")
o("mpnn_k1_kernel:")
o(f"  s_cmp_ge_u32 s2, {PW+GW}")
o("  s_cbranch_scc1 K1_END")
o("  s_load_dwordx8 s[8:15], s[0:1], 0")
o("  s_load_dwordx8 s[16:23], s[0:1], 32")
o("  s_load_dwordx2 s[24:25], s[0:1], 72")
o(f"  s_cmp_ge_u32 s2, {PW}")
o("  s_cbranch_scc1 K1_GEMM")

HIST = 0
OFFL = 1024
STG = 2048
o("  v_lshlrev_b32 v1, 4, v0")
o("  v_lshlrev_b32 v2, 3, v0")
o("  v_lshlrev_b32 v3, 2, v0")
o("  v_mov_b32 v4, 0")
o(f"  ds_write_b32 v3, v4 offset:{HIST}")
o(f"  s_mul_i32 s50, s2, {CH*4}")
o(f"  s_mul_i32 s54, s2, {CH*2}")
for r in range(1, 4):
    o(f"  s_add_u32 s{50+r}, s50, {r*3200}")
    o(f"  s_add_u32 s{54+r}, s54, {r*1600}")
o("  s_mov_b32 s58, 21400")
o("  s_mov_b32 s59, -49")
o("  s_waitcnt lgkmcnt(0)")
srd(28, 14, 15, E*4)
srd(32, 12, 13, E*4)
srd(36, 10, 11, E*2)
o(f"  s_mul_i32 s60, s2, {CH*8}")
o(f"  s_add_u32 s60, s60, {REC_OFF}")
o("  s_add_u32 s40, s24, s60")
o("  s_addc_u32 s41, s25, 0")
o("  s_and_b32 s41, s41, 0xffff")
o(f"  s_mov_b32 s42, {CH*8}")
o("  s_mov_b32 s43, 0x00020000")
srd_off(44, 24, 25, OFFT_OFF, 257*1024)
o("  v_cmp_gt_u32 vcc, 200, v0")
o("  s_and_saveexec_b64 s[62:63], vcc")
vD, vS, vE = 8, 24, 40
for r in range(4):
    o(f"  buffer_load_dwordx4 v[{vD+4*r}:{vD+4*r+3}], v1, s[28:31], s{50+r} offen")
for r in range(4):
    o(f"  buffer_load_dwordx4 v[{vS+4*r}:{vS+4*r+3}], v1, s[32:35], s{50+r} offen")
for r in range(4):
    o(f"  buffer_load_dwordx2 v[{vE+2*r}:{vE+2*r+1}], v2, s[36:39], s{54+r} offen")
o("  v_mov_b32 v5, 1")
o("  s_mov_b32 s61, 0xffff0000")
o("  s_barrier")
vA, vR, vL = 48, 64, 80
o("  s_waitcnt vmcnt(8)")
for k in range(16):
    o(f"  v_mul_u32_u24 v6, s58, v{vD+k}")
    o(f"  v_lshrrev_b32 v6, 20, v6")
    o(f"  v_mad_i32_i24 v{vL+2*k+1}, v6, s59, v{vD+k}")
    o(f"  v_lshlrev_b32 v{vA+k}, 2, v6")
    o(f"  ds_add_rtn_u32 v{vR+k}, v{vA+k}, v5 offset:{HIST}")
o("  s_waitcnt vmcnt(0)")
for k in range(16):
    r, j = k >> 2, k & 3
    ereg = vE + 2*r + (j >> 1)
    if j & 1 == 0:
        o(f"  v_lshl_or_b32 v{vL+2*k}, v{ereg}, 16, v{vS+k}")
    else:
        o(f"  v_and_or_b32 v{vL+2*k}, v{ereg}, s61, v{vS+k}")
o("  s_mov_b64 exec, s[62:63]")
o("  s_waitcnt lgkmcnt(0)")
o("  s_barrier")
o("  v_cmp_gt_u32 vcc, 64, v0")
o("  s_and_saveexec_b64 s[64:65], vcc")
o("  s_cbranch_execz K1_P_SCANDONE")
o(f"  ds_read_b128 v[112:115], v1 offset:{HIST}")
o("  s_waitcnt lgkmcnt(0)")
o("  v_add_u32 v117, v112, v113")
o("  v_add_u32 v118, v117, v114")
o("  v_add_u32 v119, v118, v115")
o("  v_mov_b32 v120, v119")
wave_scan(120)
o("  v_sub_u32 v120, v120, v119")
o("  v_add_u32 v121, v120, v112")
o("  v_add_u32 v122, v120, v117")
o("  v_add_u32 v123, v120, v118")
o(f"  ds_write_b128 v1, v[120:123] offset:{OFFL}")
o("  v_lshlrev_b32 v116, 12, v0")
o("  s_lshl_b32 s66, s2, 2")
for j in range(4):
    o(f"  buffer_store_dword v{120+j}, v116, s[44:47], s66 offen offset:{j*1024}")
o(f"  v_mov_b32 v124, {CH}")
o(f"  v_mov_b32 v125, {256*1024}")
o("  buffer_store_dword v124, v125, s[44:47], s66 offen")
o("K1_P_SCANDONE:")
o("  s_mov_b64 exec, s[64:65]")
o("  s_waitcnt lgkmcnt(0)")
o("  s_barrier")
o("  v_cmp_gt_u32 vcc, 200, v0")
o("  s_and_saveexec_b64 s[62:63], vcc")
for k in range(16):
    o(f"  ds_read_b32 v{vD+k}, v{vA+k} offset:{OFFL}")
o("  s_waitcnt lgkmcnt(0)")
for k in range(16):
    o(f"  v_add_u32 v6, v{vD+k}, v{vR+k}")
    o(f"  v_lshlrev_b32 v6, 3, v6")
    o(f"  ds_write_b64 v6, v[{vL+2*k}:{vL+2*k+1}] offset:{STG}")
o("  s_mov_b64 exec, s[62:63]")
o("  s_waitcnt lgkmcnt(0)")
o("  s_barrier")
for i in range(7):
    o(f"  ds_read_b128 v[{8+4*i}:{8+4*i+3}], v1 offset:{STG+4096*i}")
o("  v_add_u32 v2, 0x1000, v1")
o("  v_add_u32 v3, 0x2000, v1")
o("  v_add_u32 v4, 0x3000, v1")
o("  v_add_u32 v5, 0x4000, v1")
o("  v_add_u32 v6, 0x5000, v1")
o("  v_add_u32 v7, 0x6000, v1")
for i in range(7):
    o(f"  s_waitcnt lgkmcnt({6-i})")
    o(f"  buffer_store_dwordx4 v[{8+4*i}:{8+4*i+3}], v{1+i}, s[40:43], 0 offen")
o("  s_endpgm")

o("K1_GEMM:")
o(f"  s_sub_u32 s3, s2, {PW}")
o("  s_lshl_b32 s4, s3, 6")
o("  v_lshrrev_b32 v1, 6, v0")
o("  s_nop 0")
o("  v_readfirstlane_b32 s5, v1")
o("  v_and_b32 v2, 63, v0")
o("  v_and_b32 v3, 31, v2")
o("  v_lshrrev_b32 v4, 5, v2")
o("  s_and_b32 s6, s5, 1")
o("  s_lshr_b32 s7, s5, 1")
o("  s_waitcnt lgkmcnt(0)")
o("  s_cmp_eq_u32 s7, 0")
o("  s_cselect_b32 s26, 8192, 0")
o("  s_cselect_b32 s48, s18, s16")
o("  s_cselect_b32 s49, s19, s17")
o("  s_add_u32 s28, s20, s26")
o("  s_addc_u32 s29, s21, 0")
o("  s_and_b32 s29, s29, 0xffff")
o("  s_mov_b32 s30, 8192")
o("  s_mov_b32 s31, 0x00020000")
srd(32, 48, 49, 8192)
srd(36, 8, 9, N*128)
o("  s_cmp_eq_u32 s7, 0")
o(f"  s_cselect_b32 s26, {T_OFF}, {A_OFF}")
o("  s_add_u32 s40, s24, s26")
o("  s_addc_u32 s41, s25, 0")
o("  s_and_b32 s41, s41, 0xffff")
o(f"  s_mov_b32 s42, {ROWS*256}")
o("  s_mov_b32 s43, 0x00020000")
srd_off(44, 24, 25, U_OFF, ROWS*256)
o("  v_lshlrev_b32 v5, 10, v4")
o("  v_lshl_add_u32 v5, v3, 1, v5")
o("  s_lshl_b32 s26, s6, 6")
o("  v_add_u32 v5, s26, v5")
o("  v_add_u32 v6, 0x1000, v5")
o("  v_add_u32 v7, s4, v3")
o("  v_lshlrev_b32 v7, 7, v7")
o("  v_lshl_add_u32 v7, v4, 4, v7")
o("  v_add_u32 v8, 0x1000, v7")
XF = 16
WT = 48
WF = 112
AC = 144
for tt in range(2):
    for ks in range(4):
        o(f"  buffer_load_dwordx4 v[{XF+tt*16+ks*4}:{XF+tt*16+ks*4+3}], v{7+tt}, s[36:39], 0 offen offset:{ks*32}")
for m in range(2):
    for ks in range(4):
        for j in range(8):
            byte = ks*2048 + j*128
            vr = 5 if byte < 4096 else 6
            o(f"  buffer_load_ushort v{WT+m*32+ks*8+j}, v{vr}, s[{28+4*m}:{31+4*m}], 0 offen offset:{byte & 4095}")
for i in range(64):
    o(f"  v_mov_b32 v{AC+i}, 0")
o("  s_waitcnt vmcnt(0)")
for m in range(2):
    for ks in range(4):
        for p in range(4):
            lo = WT+m*32+ks*8+2*p
            o(f"  v_lshl_or_b32 v{WF+m*16+ks*4+p}, v{lo+1}, 16, v{lo}")
o("  s_nop 1")
for tt in range(2):
    for m in range(2):
        for ks in range(4):
            a = XF+tt*16+ks*4
            b = WF+m*16+ks*4
            c = AC+tt*32+m*16
            o(f"  v_mfma_f32_32x32x16_bf16 v[{c}:{c+15}], v[{a}:{a+3}], v[{b}:{b+3}], v[{c}:{c+15}]")
o("  v_lshl_add_u32 v9, v4, 2, s4")
o("  v_lshlrev_b32 v9, 8, v9")
o("  v_lshl_add_u32 v9, v3, 2, v9")
o("  s_lshl_b32 s26, s6, 7")
o("  v_add_u32 v9, s26, v9")
for tt in range(2):
    for q in range(4):
        o(f"  s_mov_b32 s{64+tt*4+q}, {(tt*32+8*q)*256}")
o("  v_mov_b32 v10, 0x71800000")
o("  v_mov_b32 v11, 0xf1800000")
o("  s_nop 15")
o("  s_nop 7")
o("  s_cmp_eq_u32 s7, 0")
o("  s_cbranch_scc0 K1_G_AU")
for tt in range(2):
    for i in range(16):
        a1 = AC+tt*32+i
        a2 = AC+tt*32+16+i
        o(f"  v_mul_f32 v12, {NLOG2E:#x}, v{a1}")
        o(f"  v_med3_f32 v12, v12, v11, v10")
        o(f"  v_cvt_pk_bf16_f32 v12, v12, v12")
        o(f"  v_and_b32 v12, 0xffff, v12")
        o(f"  v_and_b32 v13, 0x7fffffff, v{a2}")
        o(f"  v_and_b32 v14, 0x80000000, v{a2}")
        o(f"  v_sub_u32 v13, v13, v12")
        o(f"  v_add_u32 v13, 0x8000, v13")
        o(f"  v_max_i32 v13, 0, v13")
        o(f"  v_min_i32 v13, 0x7f7fffff, v13")
        o(f"  v_and_b32 v13, 0xffff0000, v13")
        o(f"  v_or3_b32 v{a1}, v13, v14, v12")
        o(f"  buffer_store_dword v{a1}, v9, s[40:43], s{64+tt*4+(i>>2)} offen offset:{(i&3)*256}")
o("  s_endpgm")
o("K1_G_AU:")
for tt in range(2):
    for i in range(16):
        a1 = AC+tt*32+i
        a2 = AC+tt*32+16+i
        o(f"  v_mul_f32 v{a1}, {NLOG2E:#x}, v{a1}")
        o(f"  buffer_store_dword v{a1}, v9, s[40:43], s{64+tt*4+(i>>2)} offen offset:{(i&3)*256}")
        o(f"  buffer_store_dword v{a2}, v9, s[44:47], s{64+tt*4+(i>>2)} offen offset:{(i&3)*256}")
o("K1_END:")
o("  s_endpgm")

L_HIST = 0
L_GOFF = 256
L_MISC = 512
L_ACC = 1024
L_A = L_ACC + BN*256
L_SORT = L_A + 52*256
NIT = KSEG // 4
o(".globl mpnn_k2_kernel")
o(".p2align 8")
o(".type mpnn_k2_kernel,@function")
o("mpnn_k2_kernel:")
o(f"  s_cmp_ge_u32 s2, {NB}")
o("  s_cbranch_scc1 K2_END")
o("  s_load_dwordx4 s[8:11], s[0:1], 48")
o("  s_load_dwordx2 s[24:25], s[0:1], 72")
o("  v_lshrrev_b32 v1, 6, v0")
o("  v_and_b32 v2, 63, v0")
o("  v_readfirstlane_b32 s5, v1")
o("  v_lshlrev_b32 v3, 4, v0")
o("  v_lshrrev_b32 v4, 2, v0")
o("  v_and_b32 v5, 3, v0")
o("  v_and_b32 v6, 15, v2")
o("  v_lshlrev_b32 v6, 4, v6")
o(f"  s_mul_i32 s6, s2, {BN*256}")
o("  s_waitcnt lgkmcnt(0)")
srd_off(28, 24, 25, OFFT_OFF, 257*1024)
srd_off(32, 24, 25, REC_OFF, PW*CH*8)
srd_off(36, 24, 25, T_OFF, ROWS*256)
srd_off(40, 24, 25, A_OFF, N*256)
srd_off(44, 24, 25, U_OFF, N*256)
srd(48, 8, 9, 129*128)
srd(52, 10, 11, N*128)
o("  v_lshlrev_b32 v7, 2, v4")
o("  s_lshl_b32 s7, s2, 10")
o("  buffer_load_dword v8, v7, s[28:31], s7 offen")
o("  buffer_load_dword v9, v7, s[28:31], s7 offen offset:1024")
o("  buffer_load_dwordx4 v[12:15], v3, s[40:43], s6 offen")
o("  buffer_load_dwordx4 v[16:19], v3, s[44:47], s6 offen")
o("  v_lshrrev_b32 v10, 1, v6")
o(f"  v_add_u32 v10, {128*128}, v10")
o("  buffer_load_dwordx2 v[20:21], v10, s[48:51], 0 offen")
o("  v_mov_b32 v22, 0")
o("  v_mov_b32 v23, 0")
o("  v_mov_b32 v24, 0")
o("  v_mov_b32 v25, 0")
o("  v_cmp_gt_u32 vcc, 784, v0")
o("  s_and_saveexec_b64 s[56:57], vcc")
o("  s_cbranch_execz K2_Z1")
o(f"  ds_write_b128 v3, v[22:25] offset:{L_ACC}")
o("K2_Z1:")
o("  s_mov_b64 exec, s[56:57]")
o("  v_cmp_gt_u32 vcc, 64, v0")
o("  s_and_saveexec_b64 s[56:57], vcc")
o("  s_cbranch_execz K2_Z2")
o(f"  ds_write_b128 v3, v[22:25] offset:0")
o("K2_Z2:")
o("  s_mov_b64 exec, s[56:57]")
o("  s_waitcnt vmcnt(3)")
o("  v_sub_u32 v9, v9, v8")
o(f"  v_cmp_gt_u32 vcc, {PW}, v4")
o("  s_nop 1")
o("  v_cndmask_b32 v9, 0, v9, vcc")
o(f"  v_min_u32 v9, {CH}, v9")
o("  v_add_u32 v8, v8, v5")
o("  v_lshlrev_b32 v8, 3, v8")
o(f"  v_mov_b32 v11, {CH*8}")
o("  v_mad_u32_u24 v8, v4, v11, v8")
o("  v_sub_u32 v26, v9, v5")
o("  s_waitcnt lgkmcnt(0)")
o("  s_barrier")
o(f"  v_mov_b32 v11, {L_MISC}")
o("  ds_max_u32 v11, v9")
o("  s_waitcnt vmcnt(2)")
o("  v_cmp_gt_u32 vcc, 784, v0")
o("  s_and_saveexec_b64 s[56:57], vcc")
o("  s_cbranch_execz K2_Z3")
o(f"  ds_write_b128 v3, v[12:15] offset:{L_A}")
o("K2_Z3:")
o("  s_mov_b64 exec, s[56:57]")
o("  s_waitcnt vmcnt(0)")
o("  v_lshlrev_b32 v28, 16, v20")
o("  v_and_b32 v29, 0xffff0000, v20")
o("  v_lshlrev_b32 v30, 16, v21")
o("  v_and_b32 v31, 0xffff0000, v21")
for j in range(4):
    o(f"  v_mul_f32 v{28+j}, {NLOG2E:#x}, v{28+j}")
o("  v_mov_b32 v27, 1")
o("  v_mov_b32 v32, 0x3f80")
o("  s_mov_b32 s60, 0")
RL = 40
RK = 64
o("K2_ROUND:")
for i in range(NIT):
    o(f"  v_cmpx_lt_i32 vcc, {4*i}, v26")
    o("  s_cbranch_execz K2_LD_DONE")
    o(f"  buffer_load_dwordx2 v[{RL+2*i}:{RL+2*i+1}], v8, s[32:35], 0 offen offset:{32*i}")
o("K2_LD_DONE:")
o("  s_mov_b64 exec, -1")
o("  s_waitcnt vmcnt(0)")
for i in range(NIT):
    o(f"  v_cmpx_lt_i32 vcc, {4*i}, v26")
    o("  s_cbranch_execz K2_AT_DONE")
    o(f"  v_lshlrev_b32 v{RL+2*i+1}, 2, v{RL+2*i+1}")
    o(f"  ds_add_rtn_u32 v{RK+i}, v{RL+2*i+1}, v27 offset:{L_HIST}")
o("K2_AT_DONE:")
o("  s_mov_b64 exec, -1")
o("  s_waitcnt lgkmcnt(0)")
o("  s_barrier")
o("  s_cmp_lg_u32 s5, 0")
o("  s_cbranch_scc1 K2_SCAN_DONE")
o("  v_lshlrev_b32 v11, 2, v2")
o(f"  ds_read_b32 v33, v11 offset:{L_HIST}")
o("  s_waitcnt lgkmcnt(0)")
o("  v_add_u32 v34, 3, v33")
o("  v_and_b32 v34, -4, v34")
o("  v_max_u32 v34, 4, v34")
o(f"  v_cmp_gt_u32 vcc, {BN}, v2")
o("  s_nop 1")
o("  v_cndmask_b32 v34, 0, v34, vcc")
o("  v_mov_b32 v35, v34")
wave_scan(35)
o("  v_readlane_b32 s61, v35, 63")
o("  v_sub_u32 v35, v35, v34")
o("  s_add_u32 s62, s61, 15")
o("  s_and_b32 s62, s62, -16")
o("  v_mov_b32 v36, s62")
o(f"  v_cmp_gt_u32 vcc, {BN}, v2")
o("  s_nop 1")
o("  v_cndmask_b32 v36, v36, v35, vcc")
o(f"  ds_write_b32 v11, v36 offset:{L_GOFF}")
o(f"  v_mov_b32 v38, {N*256}")
o("  v_mov_b32 v39, 0")
o("  v_add_u32 v37, v35, v33")
o("  v_lshlrev_b32 v37, 3, v37")
o("  v_sub_u32 v34, v34, v33")
for j in range(4):
    o(f"  v_cmpx_lt_u32 vcc, {j}, v34")
    o(f"  ds_write_b64 v37, v[38:39] offset:{L_SORT+8*j}")
o("  s_mov_b64 exec, -1")
o("  v_add_u32 v37, s61, v2")
o("  v_lshlrev_b32 v37, 3, v37")
o("  v_cmpx_gt_u32 vcc, 16, v2")
o(f"  ds_write_b64 v37, v[38:39] offset:{L_SORT}")
o("  s_mov_b64 exec, -1")
o("  s_waitcnt lgkmcnt(0)")
o("K2_SCAN_DONE:")
o("  s_barrier")
for i in range(NIT):
    o(f"  v_cmpx_lt_i32 vcc, {4*i}, v26")
    o("  s_cbranch_execz K2_SC1_DONE")
    o(f"  ds_read_b32 v{76+i}, v{RL+2*i+1} offset:{L_GOFF}")
o("K2_SC1_DONE:")
o("  s_mov_b64 exec, -1")
o("  s_waitcnt lgkmcnt(0)")
for i in range(NIT):
    o(f"  v_cmpx_lt_i32 vcc, {4*i}, v26")
    o("  s_cbranch_execz K2_SC2_DONE")
    o(f"  v_add_u32 v11, v{76+i}, v{RK+i}")
    o(f"  v_lshlrev_b32 v11, 3, v11")
    o(f"  v_and_b32 v{RL+2*i+1}, 0xffff0000, v{RL+2*i}")
    o(f"  v_and_b32 v{RL+2*i}, 0x3fff, v{RL+2*i}")
    o(f"  v_lshlrev_b32 v{RL+2*i}, 8, v{RL+2*i}")
    o(f"  ds_write_b64 v11, v[{RL+2*i}:{RL+2*i+1}] offset:{L_SORT}")
o("K2_SC2_DONE:")
o("  s_mov_b64 exec, -1")
o("  v_lshlrev_b32 v11, 2, v2")
o(f"  ds_read_b32 v33, v11 offset:{L_GOFF}")
o("  s_waitcnt lgkmcnt(0)")
o("  s_barrier")
o("  v_readlane_b32 s62, v33, 49")
o("  s_lshr_b32 s63, s62, 4")
o("  s_mul_i32 s64, s63, s5")
o("  s_lshr_b32 s64, s64, 4")
o("  s_add_u32 s65, s5, 1")
o("  s_mul_i32 s65, s63, s65")
o("  s_lshr_b32 s65, s65, 4")
o("  s_cmp_ge_u32 s64, s65")
o("  s_cbranch_scc1 K2_MAIN_DONE")
o("  s_lshl_b32 s66, s64, 4")
o("  s_lshl_b32 s67, s65, 4")
o(f"  v_cmp_gt_u32 s[56:57], {BN}, v2")
o("  v_cmp_ge_u32 vcc, s66, v33")
o("  s_and_b64 vcc, vcc, s[56:57]")
o("  s_bcnt1_i32_b64 s68, vcc")
o("  s_sub_u32 s68, s68, 1")
o("  s_add_u32 s69, s68, 1")
o("  v_readlane_b32 s70, v33, s69")
AV = 40
AC2 = 44
RB = 48
WB = 64
TT = 96
VRA = 34
VAA = 35
o("  s_lshl_b32 s71, s68, 8")
o(f"  v_add_u32 v{VAA}, s71, v6")
o(f"  ds_read_b128 v[{AV}:{AV+3}], v{VAA} offset:{L_A}")
o("  v_lshrrev_b32 v11, 4, v2")
o("  v_lshlrev_b32 v11, 3, v11")
o("  s_lshl_b32 s71, s66, 3")
o(f"  v_add_u32 v{VRA}, s71, v11")
for j in range(4):
    o(f"  v_mov_b32 v{AC2+j}, 0")
def rec_read(bf):
    for g in range(4):
        o(f"  ds_read_b64 v[{RB+bf*8+g*2}:{RB+bf*8+g*2+1}], v{VRA} offset:{L_SORT+32*g}")
    o(f"  v_add_u32 v{VRA}, 128, v{VRA}")
def issue(bf):
    for g in range(4):
        o(f"  v_add_u32 v{RB+bf*8+g*2}, v{RB+bf*8+g*2}, v6")
        o(f"  buffer_load_dwordx4 v[{WB+bf*16+g*4}:{WB+bf*16+g*4+3}], v{RB+bf*8+g*2}, s[36:39], 0 offen")
uid = [0]
def flush(final=False):
    o("  s_lshl_b32 s71, s68, 8")
    o(f"  v_add_u32 v{VAA}, s71, v6")
    for j in range(4):
        o(f"  ds_add_f32 v{VAA}, v{AC2+j} offset:{L_ACC+4*j}")
    if final:
        return
    o(f"  ds_read_b128 v[{AV}:{AV+3}], v{VAA} offset:{L_A+256}")
    o("  s_add_u32 s68, s68, 1")
    o("  s_add_u32 s69, s68, 1")
    o("  v_readlane_b32 s70, v33, s69")
    for j in range(4):
        o(f"  v_mov_b32 v{AC2+j}, 0")
    o("  s_waitcnt lgkmcnt(0)")
def compute(bf):
    for g in range(4):
        e = RB+bf*8+g*2+1
        w = WB+bf*16+g*4
        t = TT + (g & 1)*4
        o(f"  s_waitcnt vmcnt({4 + 3 - g})")
        for j in range(4):
            o(f"  v_fma_f32 v{t+j}, v{e}, v{28+j}, v{AV+j}")
        o(f"  ds_read_b64 v[{RB+bf*8+g*2}:{RB+bf*8+g*2+1}], v{VRA} offset:{L_SORT+32*g}")
        for j in range(4):
            o(f"  v_dot2_f32_bf16 v{t+j}, v{w+j}, v32, v{t+j}")
        for j in range(4):
            o(f"  v_exp_f32 v{t+j}, v{t+j}")
        for j in range(4):
            o(f"  v_add_f32 v{t+j}, 1.0, v{t+j}")
        for j in range(4):
            o(f"  v_rcp_f32 v{t+j}, v{t+j}")
        o("  s_add_u32 s66, s66, 4")
        for j in range(4):
            o(f"  v_fmac_f32 v{AC2+j}, v{t+j}, v{w+j}")
        uid[0] += 1
        u = uid[0]
        o("  s_cmp_lg_u32 s66, s70")
        o(f"  s_cbranch_scc1 K2_NF{u}")
        flush()
        o(f"K2_NF{u}:")
    o(f"  v_add_u32 v{VRA}, 128, v{VRA}")
rec_read(0)
rec_read(1)
o("  s_waitcnt lgkmcnt(0)")
issue(0)
o("K2_LOOP:")
o("  s_waitcnt lgkmcnt(0)")
issue(1)
compute(0)
o("  s_cmp_ge_u32 s66, s67")
o("  s_cbranch_scc1 K2_LOOP_EXIT")
o("  s_waitcnt lgkmcnt(0)")
issue(0)
compute(1)
o("  s_cmp_lt_u32 s66, s67")
o("  s_cbranch_scc1 K2_LOOP")
o("K2_LOOP_EXIT:")
o(f"  s_cmp_ge_u32 s68, {BN}")
o("  s_cbranch_scc1 K2_NOFINAL")
flush(final=True)
o("K2_NOFINAL:")
o("  s_waitcnt vmcnt(0) lgkmcnt(0)")
o("K2_MAIN_DONE:")
o(f"  v_mov_b32 v11, {L_MISC}")
o("  ds_read_b32 v34, v11")
o("  s_waitcnt lgkmcnt(0)")
o("  s_barrier")
o("  v_readfirstlane_b32 s61, v34")
o(f"  s_add_u32 s60, s60, {KSEG}")
o("  s_cmp_ge_u32 s60, s61")
o("  s_cbranch_scc1 K2_FINAL")
o("  s_cmp_lg_u32 s5, 0")
o("  s_cbranch_scc1 K2_NR1")
o("  v_lshlrev_b32 v11, 2, v2")
o("  v_mov_b32 v34, 0")
o(f"  ds_write_b32 v11, v34 offset:{L_HIST}")
o("  s_waitcnt lgkmcnt(0)")
o("K2_NR1:")
o("  s_barrier")
o(f"  v_subrev_u32 v26, {KSEG}, v26")
o(f"  v_add_u32 v8, {KSEG*8}, v8")
o("  s_branch K2_ROUND")
o("K2_FINAL:")
o("  v_cmp_gt_u32 vcc, 784, v0")
o("  s_and_saveexec_b64 s[56:57], vcc")
o("  s_cbranch_execz K2_END")
o(f"  ds_read_b128 v[12:15], v3 offset:{L_ACC}")
o("  v_lshlrev_b32 v11, 3, v0")
o(f"  s_mul_i32 s6, s2, {BN*128}")
o("  s_waitcnt lgkmcnt(0)")
for j in range(4):
    o(f"  v_add_f32 v{12+j}, v{12+j}, v{16+j}")
for j in range(4):
    o(f"  v_mul_f32 v{20+j}, {NLOG2E:#x}, v{12+j}")
for j in range(4):
    o(f"  v_exp_f32 v{20+j}, v{20+j}")
for j in range(4):
    o(f"  v_add_f32 v{20+j}, 1.0, v{20+j}")
for j in range(4):
    o(f"  v_rcp_f32 v{20+j}, v{20+j}")
o("  s_nop 0")
for j in range(4):
    o(f"  v_mul_f32 v{12+j}, v{12+j}, v{20+j}")
o("  v_cvt_pk_bf16_f32 v12, v12, v13")
o("  v_cvt_pk_bf16_f32 v13, v14, v15")
o("  buffer_store_dwordx2 v[12:13], v11, s[52:55], s6 offen")
o("K2_END:")
o("  s_endpgm")

o('.section .rodata,"a"')
for name, vg in (("mpnn_k1_kernel", 208), ("mpnn_k2_kernel", 104)):
    o(".p2align 6")
    o(f".amdhsa_kernel {name}")
    o(f"  .amdhsa_next_free_vgpr {vg}")
    o("  .amdhsa_next_free_sgpr 102")
    o(f"  .amdhsa_accum_offset {vg}")
    o("  .amdhsa_group_segment_fixed_size 0")
    o("  .amdhsa_kernarg_size 80")
    o("  .amdhsa_user_sgpr_count 2")
    o("  .amdhsa_user_sgpr_kernarg_segment_ptr 1")
    o("  .amdhsa_system_sgpr_workgroup_id_x 1")
    o(".end_amdhsa_kernel")

open(sys.argv[1] if len(sys.argv) > 1 else "standalone__edge_featured_mpnn_egc__graph.s", "w").write("\n".join(out) + "\n")
```

```python
import sys

N = 12500
E = 800000
NB = 256
BN = 49
PW = 250
CH = 3200
GW = 196
ROWS = 12544
KSEG = 48
T_OFF = 0
A_OFF = 4 << 20
U_OFF = 8 << 20
REC_OFF = 12 << 20
OFFT_OFF = 20 << 20
NLOG2E = 0xbfb8aa3b

import os
DBG = int(os.environ.get("DBG","0"))
EXP = os.environ.get("EXP","")
PRIO = int(os.environ.get("PRIO","1"))
out = []
def stamp(i):
    if DBG:
        o(f"  s_memtime s[{80+2*i}:{81+2*i}]")
def o(s=""):
    out.append(s)

def srd(d, lo, hi, size):
    o(f"  s_mov_b32 s{d}, s{lo}")
    o(f"  s_and_b32 s{d+1}, s{hi}, 0xffff")
    o(f"  s_mov_b32 s{d+2}, {size}")
    o(f"  s_mov_b32 s{d+3}, 0x00020000")

def srd_off(d, lo, hi, off, size):
    o(f"  s_add_u32 s{d}, s{lo}, {off}")
    o(f"  s_addc_u32 s{d+1}, s{hi}, 0")
    o(f"  s_and_b32 s{d+1}, s{d+1}, 0xffff")
    o(f"  s_mov_b32 s{d+2}, {size}")
    o(f"  s_mov_b32 s{d+3}, 0x00020000")

def wave_scan(v, tmp=None):
    for sh in (1, 2, 4, 8):
        o("  s_nop 1")
        o(f"  v_add_u32_dpp v{v}, v{v}, v{v} row_shr:{sh} row_mask:0xf bank_mask:0xf")
    o("  s_nop 1")
    o(f"  v_add_u32_dpp v{v}, v{v}, v{v} row_bcast:15 row_mask:0xa bank_mask:0xf")
    o("  s_nop 1")
    o(f"  v_add_u32_dpp v{v}, v{v}, v{v} row_bcast:31 row_mask:0xc bank_mask:0xf")
    o("  s_nop 1")

K2_LDS = 128 * 1024
K1_LDS = 32 * 1024
o(f"; @launch kernel=mpnn_k1_kernel grid=({PW+GW},1,1) block=(256,1,1) lds={K1_LDS}")
o(f"; @launch kernel=mpnn_k2_kernel grid=({NB},1,1) block=(1024,1,1) lds={K2_LDS}")
o('.amdgcn_target "amdgcn-amd-amdhsa--gfx950"')
o(".text")

o(".globl mpnn_k1_kernel")
o(".p2align 8")
o(".type mpnn_k1_kernel,@function")
o("mpnn_k1_kernel:")
o(f"  s_cmp_ge_u32 s2, {PW+GW}")
o("  s_cbranch_scc1 K1_END")
o("  s_load_dwordx8 s[8:15], s[0:1], 0")
o("  s_load_dwordx8 s[16:23], s[0:1], 32")
o("  s_load_dwordx2 s[24:25], s[0:1], 72")
o(f"  s_cmp_ge_u32 s2, {PW}")
o("  s_cbranch_scc1 K1_GEMM")

HIST = 0
OFFL = 1024
STG = 2048
o("  v_lshlrev_b32 v1, 4, v0")
o("  v_lshlrev_b32 v2, 3, v0")
o("  v_lshlrev_b32 v3, 2, v0")
o("  v_mov_b32 v4, 0")
o(f"  ds_write_b32 v3, v4 offset:{HIST}")
o(f"  s_mul_i32 s50, s2, {CH*4}")
o(f"  s_mul_i32 s54, s2, {CH*2}")
for r in range(1, 4):
    o(f"  s_add_u32 s{50+r}, s50, {r*3200}")
    o(f"  s_add_u32 s{54+r}, s54, {r*1600}")
o("  s_mov_b32 s58, 21400")
o("  s_mov_b32 s59, -49")
o("  s_waitcnt lgkmcnt(0)")
srd(28, 14, 15, E*4)
srd(32, 12, 13, E*4)
srd(36, 10, 11, E*2)
o(f"  s_mul_i32 s60, s2, {CH*8}")
o(f"  s_add_u32 s60, s60, {REC_OFF}")
o("  s_add_u32 s40, s24, s60")
o("  s_addc_u32 s41, s25, 0")
o("  s_and_b32 s41, s41, 0xffff")
o(f"  s_mov_b32 s42, {CH*8}")
o("  s_mov_b32 s43, 0x00020000")
srd_off(44, 24, 25, OFFT_OFF, 257*1024)
o("  v_cmp_gt_u32 vcc, 200, v0")
o("  s_and_saveexec_b64 s[62:63], vcc")
vD, vS, vE = 8, 24, 40
for r in range(4):
    o(f"  buffer_load_dwordx4 v[{vD+4*r}:{vD+4*r+3}], v1, s[28:31], s{50+r} offen")
for r in range(4):
    o(f"  buffer_load_dwordx4 v[{vS+4*r}:{vS+4*r+3}], v1, s[32:35], s{50+r} offen")
for r in range(4):
    o(f"  buffer_load_dwordx2 v[{vE+2*r}:{vE+2*r+1}], v2, s[36:39], s{54+r} offen")
o("  v_mov_b32 v5, 1")
o("  s_mov_b32 s61, 0xffff0000")
o("  s_barrier")
vA, vR, vL = 48, 64, 80
o("  s_waitcnt vmcnt(8)")
for k in range(16):
    o(f"  v_mul_u32_u24 v6, s58, v{vD+k}")
    o(f"  v_lshrrev_b32 v6, 20, v6")
    o(f"  v_mad_i32_i24 v{vL+2*k+1}, v6, s59, v{vD+k}")
    o(f"  v_lshlrev_b32 v{vA+k}, 2, v6")
    o(f"  ds_add_rtn_u32 v{vR+k}, v{vA+k}, v5 offset:{HIST}")
o("  s_waitcnt vmcnt(0)")
for k in range(16):
    r, j = k >> 2, k & 3
    ereg = vE + 2*r + (j >> 1)
    if j & 1 == 0:
        o(f"  v_lshl_or_b32 v{vL+2*k}, v{ereg}, 16, v{vS+k}")
    else:
        o(f"  v_and_or_b32 v{vL+2*k}, v{ereg}, s61, v{vS+k}")
o("  s_mov_b64 exec, s[62:63]")
o("  s_waitcnt lgkmcnt(0)")
o("  s_barrier")
o("  v_cmp_gt_u32 vcc, 64, v0")
o("  s_and_saveexec_b64 s[64:65], vcc")
o("  s_cbranch_execz K1_P_SCANDONE")
o(f"  ds_read_b128 v[112:115], v1 offset:{HIST}")
o("  s_waitcnt lgkmcnt(0)")
o("  v_add_u32 v117, v112, v113")
o("  v_add_u32 v118, v117, v114")
o("  v_add_u32 v119, v118, v115")
o("  v_mov_b32 v120, v119")
wave_scan(120)
o("  v_sub_u32 v120, v120, v119")
o("  v_add_u32 v121, v120, v112")
o("  v_add_u32 v122, v120, v117")
o("  v_add_u32 v123, v120, v118")
o(f"  ds_write_b128 v1, v[120:123] offset:{OFFL}")
o("  v_lshlrev_b32 v116, 12, v0")
o("  s_lshl_b32 s66, s2, 2")
for j in range(4):
    o(f"  buffer_store_dword v{120+j}, v116, s[44:47], s66 offen offset:{j*1024}")
o(f"  v_mov_b32 v124, {CH}")
o(f"  v_mov_b32 v125, {256*1024}")
o("  buffer_store_dword v124, v125, s[44:47], s66 offen")
o("K1_P_SCANDONE:")
o("  s_mov_b64 exec, s[64:65]")
o("  s_waitcnt lgkmcnt(0)")
o("  s_barrier")
o("  v_cmp_gt_u32 vcc, 200, v0")
o("  s_and_saveexec_b64 s[62:63], vcc")
for k in range(16):
    o(f"  ds_read_b32 v{vD+k}, v{vA+k} offset:{OFFL}")
o("  s_waitcnt lgkmcnt(0)")
for k in range(16):
    o(f"  v_add_u32 v6, v{vD+k}, v{vR+k}")
    o(f"  v_lshlrev_b32 v6, 3, v6")
    o(f"  ds_write_b64 v6, v[{vL+2*k}:{vL+2*k+1}] offset:{STG}")
o("  s_mov_b64 exec, s[62:63]")
o("  s_waitcnt lgkmcnt(0)")
o("  s_barrier")
for i in range(7):
    o(f"  ds_read_b128 v[{8+4*i}:{8+4*i+3}], v1 offset:{STG+4096*i}")
o("  v_add_u32 v2, 0x1000, v1")
o("  v_add_u32 v3, 0x2000, v1")
o("  v_add_u32 v4, 0x3000, v1")
o("  v_add_u32 v5, 0x4000, v1")
o("  v_add_u32 v6, 0x5000, v1")
o("  v_add_u32 v7, 0x6000, v1")
for i in range(7):
    o(f"  s_waitcnt lgkmcnt({6-i})")
    o(f"  buffer_store_dwordx4 v[{8+4*i}:{8+4*i+3}], v{1+i}, s[40:43], 0 offen")
o("  s_endpgm")

o("K1_GEMM:")
o(f"  s_sub_u32 s3, s2, {PW}")
o("  s_lshl_b32 s4, s3, 6")
o("  v_lshrrev_b32 v1, 6, v0")
o("  s_nop 0")
o("  v_readfirstlane_b32 s5, v1")
o("  v_and_b32 v2, 63, v0")
o("  v_and_b32 v3, 31, v2")
o("  v_lshrrev_b32 v4, 5, v2")
o("  s_and_b32 s6, s5, 1")
o("  s_lshr_b32 s7, s5, 1")
o("  s_waitcnt lgkmcnt(0)")
o("  s_cmp_eq_u32 s7, 0")
o("  s_cselect_b32 s26, 8192, 0")
o("  s_cselect_b32 s48, s18, s16")
o("  s_cselect_b32 s49, s19, s17")
o("  s_add_u32 s28, s20, s26")
o("  s_addc_u32 s29, s21, 0")
o("  s_and_b32 s29, s29, 0xffff")
o("  s_mov_b32 s30, 8192")
o("  s_mov_b32 s31, 0x00020000")
srd(32, 48, 49, 8192)
srd(36, 8, 9, N*128)
o("  s_cmp_eq_u32 s7, 0")
o(f"  s_cselect_b32 s26, {T_OFF}, {A_OFF}")
o("  s_add_u32 s40, s24, s26")
o("  s_addc_u32 s41, s25, 0")
o("  s_and_b32 s41, s41, 0xffff")
o(f"  s_mov_b32 s42, {ROWS*256}")
o("  s_mov_b32 s43, 0x00020000")
srd_off(44, 24, 25, U_OFF, ROWS*256)
o("  v_lshlrev_b32 v5, 10, v4")
o("  v_lshl_add_u32 v5, v3, 1, v5")
o("  s_lshl_b32 s26, s6, 6")
o("  v_add_u32 v5, s26, v5")
o("  v_add_u32 v6, 0x1000, v5")
o("  v_add_u32 v7, s4, v3")
o("  v_lshlrev_b32 v7, 7, v7")
o("  v_lshl_add_u32 v7, v4, 4, v7")
o("  v_add_u32 v8, 0x1000, v7")
XF = 16
WT = 48
WF = 112
AC = 144
for tt in range(2):
    for ks in range(4):
        o(f"  buffer_load_dwordx4 v[{XF+tt*16+ks*4}:{XF+tt*16+ks*4+3}], v{7+tt}, s[36:39], 0 offen offset:{ks*32}")
for m in range(2):
    for ks in range(4):
        for j in range(8):
            byte = ks*2048 + j*128
            vr = 5 if byte < 4096 else 6
            o(f"  buffer_load_ushort v{WT+m*32+ks*8+j}, v{vr}, s[{28+4*m}:{31+4*m}], 0 offen offset:{byte & 4095}")
for i in range(64):
    o(f"  v_mov_b32 v{AC+i}, 0")
o("  s_waitcnt vmcnt(0)")
for m in range(2):
    for ks in range(4):
        for p in range(4):
            lo = WT+m*32+ks*8+2*p
            o(f"  v_lshl_or_b32 v{WF+m*16+ks*4+p}, v{lo+1}, 16, v{lo}")
o("  s_nop 1")
for tt in range(2):
    for m in range(2):
        for ks in range(4):
            a = XF+tt*16+ks*4
            b = WF+m*16+ks*4
            c = AC+tt*32+m*16
            o(f"  v_mfma_f32_32x32x16_bf16 v[{c}:{c+15}], v[{a}:{a+3}], v[{b}:{b+3}], v[{c}:{c+15}]")
o("  v_lshl_add_u32 v9, v4, 2, s4")
o("  v_lshlrev_b32 v9, 8, v9")
o("  v_lshl_add_u32 v9, v3, 2, v9")
o("  s_lshl_b32 s26, s6, 7")
o("  v_add_u32 v9, s26, v9")
for tt in range(2):
    for q in range(4):
        o(f"  s_mov_b32 s{64+tt*4+q}, {(tt*32+8*q)*256}")
o("  v_mov_b32 v10, 0x71800000")
o("  v_mov_b32 v11, 0xf1800000")
o("  s_nop 15")
o("  s_nop 7")
o("  s_cmp_eq_u32 s7, 0")
o("  s_cbranch_scc0 K1_G_AU")
for tt in range(2):
    for i in range(16):
        a1 = AC+tt*32+i
        a2 = AC+tt*32+16+i
        o(f"  v_mul_f32 v12, {NLOG2E:#x}, v{a1}")
        o(f"  v_med3_f32 v12, v12, v11, v10")
        o(f"  v_cvt_pk_bf16_f32 v12, v12, v12")
        o(f"  v_and_b32 v12, 0xffff, v12")
        o(f"  v_and_b32 v13, 0x7fffffff, v{a2}")
        o(f"  v_and_b32 v14, 0x80000000, v{a2}")
        o(f"  v_sub_u32 v13, v13, v12")
        o(f"  v_add_u32 v13, 0x8000, v13")
        o(f"  v_max_i32 v13, 0, v13")
        o(f"  v_min_i32 v13, 0x7f7fffff, v13")
        o(f"  v_and_b32 v13, 0xffff0000, v13")
        o(f"  v_or3_b32 v{a1}, v13, v14, v12")
        o(f"  buffer_store_dword v{a1}, v9, s[40:43], s{64+tt*4+(i>>2)} offen offset:{(i&3)*256}")
o("  s_endpgm")
o("K1_G_AU:")
for tt in range(2):
    for i in range(16):
        a1 = AC+tt*32+i
        a2 = AC+tt*32+16+i
        o(f"  v_mul_f32 v{a1}, {NLOG2E:#x}, v{a1}")
        o(f"  buffer_store_dword v{a1}, v9, s[40:43], s{64+tt*4+(i>>2)} offen offset:{(i&3)*256}")
        o(f"  buffer_store_dword v{a2}, v9, s[44:47], s{64+tt*4+(i>>2)} offen offset:{(i&3)*256}")
o("K1_END:")
o("  s_endpgm")

L_HIST = 0
L_GOFF = 256
L_MISC = 512
L_HN = 576
L_HEAD = 1024
L_ACC = L_HEAD + 16*256
L_A = L_ACC + BN*256
L_SORT = L_A + 52*256
NIT = KSEG // 4
o(".globl mpnn_k2_kernel")
o(".p2align 8")
o(".type mpnn_k2_kernel,@function")
o("mpnn_k2_kernel:")
o(f"  s_cmp_ge_u32 s2, {NB}")
o("  s_cbranch_scc1 K2_END")
stamp(0)
o("  s_load_dwordx4 s[8:11], s[0:1], 48")
o("  s_load_dwordx2 s[12:13], s[0:1], 64")
o("  s_load_dwordx2 s[24:25], s[0:1], 72")
o("  v_lshrrev_b32 v1, 6, v0")
o("  v_and_b32 v2, 63, v0")
o("  v_readfirstlane_b32 s5, v1")
o("  v_lshlrev_b32 v3, 4, v0")
o("  v_lshrrev_b32 v4, 2, v0")
o("  v_and_b32 v5, 3, v0")
o("  v_and_b32 v6, 15, v2")
o("  v_lshlrev_b32 v6, 4, v6")
o("  v_lshlrev_b32 v7, 2, v4")
o("  s_lshl_b32 s7, s2, 10")
o(f"  s_mul_i32 s6, s2, {BN*256}")
o("  s_waitcnt lgkmcnt(0)")
srd_off(28, 24, 25, OFFT_OFF, 257*1024)
o("  buffer_load_dword v8, v7, s[28:31], s7 offen")
o("  buffer_load_dword v9, v7, s[28:31], s7 offen offset:1024")
srd_off(32, 24, 25, REC_OFF, PW*CH*8)
srd_off(36, 24, 25, T_OFF, ROWS*256)
srd_off(40, 24, 25, A_OFF, N*256)
srd_off(44, 24, 25, U_OFF, N*256)
srd(48, 8, 9, 129*128)
srd(52, 10, 11, N*128)
o("  buffer_load_dwordx4 v[12:15], v3, s[40:43], s6 offen")
o("  buffer_load_dwordx4 v[16:19], v3, s[44:47], s6 offen")
o("  v_lshrrev_b32 v10, 1, v6")
o(f"  v_add_u32 v10, {128*128}, v10")
o("  buffer_load_dwordx2 v[20:21], v10, s[48:51], 0 offen")
o("  v_mov_b32 v22, 0")
o("  v_mov_b32 v23, 0")
o("  v_mov_b32 v24, 0")
o("  v_mov_b32 v25, 0")
o("  s_cmp_lg_u32 s5, 0")
o("  s_cbranch_scc1 K2_Z2")
o(f"  ds_write_b128 v3, v[22:25] offset:0")
o("K2_Z2:")
o("  v_lshrrev_b32 v10, 4, v2")
o("  v_and_b32 v11, 1, v10")
o("  v_lshlrev_b32 v11, 3, v11")
o("  v_lshrrev_b32 v10, 1, v10")
o("  v_lshl_add_u32 v11, v10, 2, v11")
o("  v_add_u32 v36, v11, v6")
o("  v_mov_b32 v27, 1")
o("  v_mov_b32 v32, 0x3f80")
o("  s_mov_b32 s60, 0")
o(f"  v_mov_b32 v11, {CH*8}")
o("  s_waitcnt vmcnt(3)")
stamp(1)
o("  v_sub_u32 v9, v9, v8")
o(f"  v_cmp_gt_u32 vcc, {PW}, v4")
o("  v_add_u32 v8, v8, v5")
o("  v_lshlrev_b32 v8, 3, v8")
o("  v_cndmask_b32 v9, 0, v9, vcc")
o(f"  v_min_u32 v9, {CH}, v9")
o("  v_mad_u32_u24 v8, v4, v11, v8")
o("  v_sub_u32 v26, v9, v5")
RL = 40
RK = 64
o("K2_ROUND:")
for i in range(NIT):
    o(f"  v_cmpx_lt_i32 vcc, {4*i}, v26")
    o("  s_cbranch_execz K2_LD_DONE")
    o(f"  buffer_load_dwordx2 v[{RL+2*i}:{RL+2*i+1}], v8, s[32:35], 0 offen offset:{32*i}")
o("K2_LD_DONE:")
o("  s_mov_b64 exec, -1")
o("  s_waitcnt lgkmcnt(0)")
o("  s_barrier")
o("  s_cmp_lg_u32 s60, 0")
o("  s_cbranch_scc1 K2_SETUP_DONE")
o(f"  v_mov_b32 v11, {L_MISC}")
o("  ds_max_u32 v11, v9")
o("  s_waitcnt vmcnt(0)")
o("  v_cmp_gt_u32 vcc, 784, v0")
o("  s_and_saveexec_b64 s[56:57], vcc")
o("  s_cbranch_execz K2_Z3")
o(f"  ds_write_b128 v3, v[12:15] offset:{L_A}")
o("K2_Z3:")
o("  s_mov_b64 exec, s[56:57]")
o("  v_lshlrev_b32 v28, 16, v20")
o("  v_and_b32 v29, 0xffff0000, v20")
o("  v_lshlrev_b32 v30, 16, v21")
o("  v_and_b32 v31, 0xffff0000, v21")
for j in range(4):
    o(f"  v_mul_f32 v{28+j}, {NLOG2E:#x}, v{28+j}")
o("K2_SETUP_DONE:")
o("  s_waitcnt vmcnt(0)")
stamp(2)
for i in range(NIT):
    o(f"  v_cmpx_lt_i32 vcc, {4*i}, v26")
    o("  s_cbranch_execz K2_AT_DONE")
    o(f"  v_lshlrev_b32 v{RL+2*i+1}, 2, v{RL+2*i+1}")
    o(f"  ds_add_rtn_u32 v{RK+i}, v{RL+2*i+1}, v27 offset:{L_HIST}")
o("K2_AT_DONE:")
o("  s_mov_b64 exec, -1")
o("  s_waitcnt lgkmcnt(0)")
o("  s_barrier")
o("  s_cmp_lg_u32 s5, 0")
o("  s_cbranch_scc1 K2_SCAN_DONE")
o("  v_lshlrev_b32 v11, 2, v2")
o(f"  ds_read_b32 v33, v11 offset:{L_HIST}")
o("  s_waitcnt lgkmcnt(0)")
o("  v_add_u32 v34, 3, v33")
o("  v_and_b32 v34, -4, v34")
o("  v_max_u32 v34, 4, v34")
o(f"  v_cmp_gt_u32 vcc, {BN}, v2")
o("  s_nop 1")
o("  v_cndmask_b32 v34, 0, v34, vcc")
o("  v_mov_b32 v35, v34")
wave_scan(35)
o("  v_readlane_b32 s61, v35, 63")
o("  v_sub_u32 v35, v35, v34")
o("  s_add_u32 s62, s61, 15")
o("  s_and_b32 s62, s62, -16")
o("  v_mov_b32 v37, s62")
o(f"  v_cmp_gt_u32 vcc, {BN}, v2")
o("  s_nop 1")
o("  v_cndmask_b32 v37, v37, v35, vcc")
o(f"  ds_write_b32 v11, v37 offset:{L_GOFF}")
o(f"  v_mov_b32 v38, {N*256}")
o("  v_mov_b32 v39, 0")
o("  v_add_u32 v37, v35, v33")
o("  v_lshlrev_b32 v37, 3, v37")
o("  v_sub_u32 v34, v34, v33")
for j in range(4):
    o(f"  v_cmpx_lt_u32 vcc, {j}, v34")
    o(f"  ds_write_b64 v37, v[38:39] offset:{L_SORT+8*j}")
o("  s_mov_b64 exec, -1")
o("  v_add_u32 v37, s61, v2")
o("  v_lshlrev_b32 v37, 3, v37")
o("  v_cmpx_gt_u32 vcc, 16, v2")
o(f"  ds_write_b64 v37, v[38:39] offset:{L_SORT}")
o("  s_mov_b64 exec, -1")
o("  s_waitcnt lgkmcnt(0)")
o("K2_SCAN_DONE:")
o("  s_barrier")
for i in range(NIT):
    o(f"  v_cmpx_lt_i32 vcc, {4*i}, v26")
    o("  s_cbranch_execz K2_SC1_DONE")
    o(f"  ds_read_b32 v{76+i}, v{RL+2*i+1} offset:{L_GOFF}")
o("K2_SC1_DONE:")
o("  s_mov_b64 exec, -1")
o("  v_lshlrev_b32 v11, 2, v2")
o(f"  ds_read_b32 v33, v11 offset:{L_GOFF}")
o("  s_waitcnt lgkmcnt(0)")
for i in range(NIT):
    o(f"  v_cmpx_lt_i32 vcc, {4*i}, v26")
    o("  s_cbranch_execz K2_SC2_DONE")
    o(f"  v_add_u32 v11, v{76+i}, v{RK+i}")
    o(f"  v_lshlrev_b32 v11, 3, v11")
    o(f"  v_and_b32 v{RL+2*i+1}, 0xffff0000, v{RL+2*i}")
    o(f"  v_and_b32 v{RL+2*i}, 0x3fff, v{RL+2*i}")
    o(f"  v_lshlrev_b32 v{RL+2*i}, 8, v{RL+2*i}")
    o(f"  ds_write_b64 v11, v[{RL+2*i}:{RL+2*i+1}] offset:{L_SORT}")
o("K2_SC2_DONE:")
o("  s_mov_b64 exec, -1")
o("  v_readlane_b32 s62, v33, 49")
o("  s_lshr_b32 s63, s62, 4")
o("  s_mul_i32 s64, s63, s5")
o("  s_lshr_b32 s64, s64, 4")
o("  s_add_u32 s65, s5, 1")
o("  s_mul_i32 s65, s63, s65")
o("  s_lshr_b32 s65, s65, 4")
o("  s_lshl_b32 s66, s64, 4")
o("  s_lshl_b32 s67, s65, 4")
o(f"  v_cmp_gt_u32 s[56:57], {BN}, v2")
o("  v_cmp_ge_u32 vcc, s66, v33")
o("  s_and_b64 vcc, vcc, s[56:57]")
o("  s_bcnt1_i32_b64 s68, vcc")
o("  s_sub_u32 s68, s68, 1")
o("  s_add_u32 s69, s68, 1")
o("  v_readlane_b32 s70, v33, s69")
o("  v_readlane_b32 s72, v33, s68")
o("  s_cmp_lg_u32 s72, s66")
o("  s_cselect_b32 s73, 1, 0")
o("  s_cmp_ge_u32 s64, s65")
o("  s_cselect_b32 s73, 0, s73")
o("  s_cmp_lg_u32 s73, 0")
o("  s_cselect_b32 s74, s68, -1")
o("  v_mov_b32 v11, s74")
o("  s_lshl_b32 s74, s5, 2")
o("  v_mov_b32 v10, s74")
o(f"  ds_write_b32 v10, v11 offset:{L_HN}")
o("  s_waitcnt lgkmcnt(0)")
o("  s_barrier")
stamp(3)
o("  s_cmp_ge_u32 s64, s65")
o("  s_cbranch_scc1 K2_MAIN_DONE")
AV = 40
AC2 = 44
RB = 48
WB = 72
TT = 120
NBUF = 3
VRA = 34
VAA = 35
o("  s_lshl_b32 s71, s68, 8")
o(f"  v_add_u32 v{VAA}, s71, v6")
o(f"  ds_read_b128 v[{AV}:{AV+3}], v{VAA} offset:{L_A}")
o("  v_lshrrev_b32 v11, 4, v2")
o("  v_lshlrev_b32 v11, 3, v11")
o("  s_lshl_b32 s71, s66, 3")
o(f"  v_add_u32 v{VRA}, s71, v11")
for j in range(4):
    o(f"  v_mov_b32 v{AC2+j}, 0")
o("  v_mov_b32 v38, 1.0")
o("  v_mov_b32 v39, 1.0")
def rec_read(bf):
    for g in range(4):
        o(f"  ds_read_b64 v[{RB+bf*8+g*2}:{RB+bf*8+g*2+1}], v{VRA} offset:{L_SORT+32*g}")
    o(f"  v_add_u32 v{VRA}, 128, v{VRA}")
def issue(bf):
    for g in range(4):
        if EXP == "samerow":
            o(f"  v_mov_b32 v{RB+bf*8+g*2}, v6")
        else:
            o(f"  v_add_u32 v{RB+bf*8+g*2}, v{RB+bf*8+g*2}, v6")
        if EXP != "noload":
            o(f"  buffer_load_dwordx4 v[{WB+bf*16+g*4}:{WB+bf*16+g*4+3}], v{RB+bf*8+g*2}, s[36:39], 0 offen")
uid = [0]
def compute(bf):
    for g in range(4):
        r = RB+bf*8+g*2
        w = WB+bf*16+g*4
        t = TT + (g & 1)*4
        o(f"  s_waitcnt vmcnt({4*(NBUF-1) + 3 - g})")
        for j in (0, 2):
            o(f"  v_pk_fma_f32 v[{t+j}:{t+j+1}], v[{r}:{r+1}], v[{28+j}:{29+j}], v[{AV+j}:{AV+j+1}] op_sel:[1,0,0] op_sel_hi:[1,1,1]")
        o(f"  ds_read_b64 v[{r}:{r+1}], v{VRA} offset:{L_SORT+32*g}")
        for j in range(4):
            o(f"  v_dot2_f32_bf16 v{t+j}, v{w+j}, v32, v{t+j}")
        if EXP != "nocompute":
            for j in range(4):
                o(f"  v_exp_f32 v{t+j}, v{t+j}")
            o("  s_nop 0")
            for j in (0, 2):
                o(f"  v_pk_add_f32 v[{t+j}:{t+j+1}], v[{t+j}:{t+j+1}], v[38:39]")
            for j in range(4):
                o(f"  v_rcp_f32 v{t+j}, v{t+j}")
        o("  s_add_u32 s66, s66, 4")
        for j in (0, 2):
            o(f"  v_pk_fma_f32 v[{AC2+j}:{AC2+j+1}], v[{t+j}:{t+j+1}], v[{w+j}:{w+j+1}], v[{AC2+j}:{AC2+j+1}]")
        uid[0] += 1
        u = uid[0]
        o("  s_cmp_lg_u32 s66, s70")
        o(f"  s_cbranch_scc1 K2_NF{u}")
        o("  s_getpc_b64 s[76:77]")
        o("  s_add_u32 s76, s76, 12")
        o("  s_addc_u32 s77, s77, 0")
        o("  s_branch K2_FLUSH")
        o(f"K2_NF{u}:")
    o(f"  v_add_u32 v{VRA}, 128, v{VRA}")
for b in range(NBUF):
    rec_read(b)
o("  s_waitcnt lgkmcnt(0)")
for b in range(NBUF-1):
    issue(b)
o("  s_sub_u32 s78, s67, s66")
o("  s_lshr_b32 s78, s78, 2")
o("  s_add_u32 s79, s66, s78")
o("  s_mov_b32 s75, 3")
o("  s_setprio 3")
o("K2_LOOP:")
for b in range(NBUF):
    o("  s_waitcnt lgkmcnt(0)")
    issue((b + NBUF - 1) % NBUF)
    compute(b)
    if b < NBUF-1:
        o("  s_cmp_ge_u32 s66, s67")
        o("  s_cbranch_scc1 K2_LOOP_EXIT")
if PRIO:
    o("  s_cmp_lt_u32 s66, s79")
    o("  s_cbranch_scc1 K2_NOPRIO")
    o("  s_add_u32 s79, s79, s78")
    o("  s_sub_u32 s75, s75, 1")
    o("  s_cmp_eq_u32 s75, 2")
    o("  s_cbranch_scc0 K2_P1")
    o("  s_setprio 2")
    o("  s_branch K2_NOPRIO")
    o("K2_P1:")
    o("  s_cmp_eq_u32 s75, 1")
    o("  s_cbranch_scc0 K2_P0")
    o("  s_setprio 1")
    o("  s_branch K2_NOPRIO")
    o("K2_P0:")
    o("  s_setprio 0")
    o("K2_NOPRIO:")
o("  s_cmp_lt_u32 s66, s67")
o("  s_cbranch_scc1 K2_LOOP")
o("K2_LOOP_EXIT:")
o("  s_setprio 0")
o("  v_readlane_b32 s72, v33, s68")
o("  s_cmp_ge_u32 s72, s67")
o("  s_cbranch_scc1 K2_NOFINAL")
o("  s_getpc_b64 s[76:77]")
o("  s_add_u32 s76, s76, 12")
o("  s_addc_u32 s77, s77, 0")
o("  s_branch K2_FLUSH")
o("K2_NOFINAL:")
o("  s_waitcnt vmcnt(0) lgkmcnt(0)")
o("K2_MAIN_DONE:")
stamp(4)
o(f"  v_mov_b32 v11, {L_MISC}")
o("  ds_read_b32 v34, v11")
o("  s_barrier")
o("  v_lshlrev_b32 v10, 2, v2")
o(f"  ds_read_b32 v35, v10 offset:{L_HN}")
o(f"  ds_read_b128 v[12:15], v3 offset:{L_ACC}")
o("  v_lshrrev_b32 v10, 4, v0")
o("  s_waitcnt lgkmcnt(0)")
o("  v_readfirstlane_b32 s61, v34")
for w in range(16):
    o(f"  v_readlane_b32 s72, v35, {w}")
    o("  s_nop 1")
    o("  v_cmpx_eq_u32 vcc, s72, v10")
    o(f"  s_cbranch_execz K2_CB{w}")
    o(f"  ds_read_b128 v[20:23], v6 offset:{L_HEAD+256*w}")
    o("  s_waitcnt lgkmcnt(0)")
    for j in range(4):
        o(f"  v_add_f32 v{12+j}, v{12+j}, v{20+j}")
    o(f"K2_CB{w}:")
    o("  s_mov_b64 exec, -1")
o(f"  s_add_u32 s60, s60, {KSEG}")
o("  s_cmp_ge_u32 s60, s61")
o("  s_cbranch_scc1 K2_FINAL")
o("  v_cmp_gt_u32 vcc, 784, v0")
o("  s_and_saveexec_b64 s[56:57], vcc")
o("  s_cbranch_execz K2_NR0")
o(f"  ds_write_b128 v3, v[12:15] offset:{L_ACC}")
o("K2_NR0:")
o("  s_mov_b64 exec, s[56:57]")
o("  s_cmp_lg_u32 s5, 0")
o("  s_cbranch_scc1 K2_NR1")
o("  v_lshlrev_b32 v11, 2, v2")
o("  v_mov_b32 v34, 0")
o(f"  ds_write_b32 v11, v34 offset:{L_HIST}")
o("K2_NR1:")
o(f"  v_subrev_u32 v26, {KSEG}, v26")
o(f"  v_add_u32 v8, {KSEG*8}, v8")
o("  s_branch K2_ROUND")
o("K2_FINAL:")
stamp(5)
o("  v_cmp_gt_u32 vcc, 784, v0")
o("  s_and_saveexec_b64 s[56:57], vcc")
o("  s_cbranch_execz K2_END")
o("  v_lshlrev_b32 v11, 3, v0")
o(f"  s_mul_i32 s6, s2, {BN*128}")
for j in range(4):
    o(f"  v_add_f32 v{12+j}, v{12+j}, v{16+j}")
for j in range(4):
    o(f"  v_mul_f32 v{20+j}, {NLOG2E:#x}, v{12+j}")
for j in range(4):
    o(f"  v_exp_f32 v{20+j}, v{20+j}")
for j in range(4):
    o(f"  v_add_f32 v{20+j}, 1.0, v{20+j}")
for j in range(4):
    o(f"  v_rcp_f32 v{20+j}, v{20+j}")
o("  s_nop 0")
for j in range(4):
    o(f"  v_mul_f32 v{12+j}, v{12+j}, v{20+j}")
o("  v_cvt_pk_bf16_f32 v12, v12, v13")
o("  v_cvt_pk_bf16_f32 v13, v14, v15")
o("  buffer_store_dwordx2 v[12:13], v11, s[52:55], s6 offen")
if DBG:
    stamp(6)
    o("  s_waitcnt lgkmcnt(0)")
    o("  s_and_b32 s72, s2, 63")
    o("  s_cmp_lg_u32 s72, 5")
    o("  s_cbranch_scc1 K2_END")
    o("  s_cmp_gt_u32 s5, 1")
    o("  s_cbranch_scc1 K2_END")
    o("  s_lshr_b32 s72, s2, 6")
    o("  s_lshl_b32 s72, s72, 1")
    o("  s_add_u32 s72, s72, s5")
    o("  s_lshl_b32 s72, s72, 5")
    srd(76, 12, 13, 256)
    o("  v_mov_b32 v1, s72")
    for i in range(1, 7):
        o(f"  s_sub_u32 s73, s{80+2*i}, s80")
        o(f"  v_mov_b32 v2, s73")
        o(f"  buffer_store_dword v2, v1, s[76:79], 0 offen offset:{4*i}")
o("K2_END:")
o("  s_endpgm")
o("K2_FLUSH:")
o("  s_nop 1")
o(f"  v_permlane32_swap_b32 v{AC2}, v{AC2+1}")
o(f"  v_permlane32_swap_b32 v{AC2+2}, v{AC2+3}")
o("  s_lshl_b32 s71, s68, 8")
o(f"  v_add_u32 v{VAA}, s71, v6")
o(f"  v_add_f32 v{AC2}, v{AC2}, v{AC2+1}")
o(f"  v_add_f32 v{AC2+2}, v{AC2+2}, v{AC2+3}")
o(f"  ds_read_b128 v[{AV}:{AV+3}], v{VAA} offset:{L_A+256}")
o(f"  v_add_u32 v{VAA}, s71, v36")
o(f"  v_permlane16_swap_b32 v{AC2}, v{AC2+2}")
o("  s_cmp_lg_u32 s73, 0")
o("  s_cbranch_scc1 K2_FL_HEAD")
o(f"  v_add_f32 v{AC2}, v{AC2}, v{AC2+2}")
o("  s_cmp_eq_u32 s60, 0")
o("  s_cbranch_scc1 K2_FL_W")
o(f"  ds_read_b32 v{AC2+1}, v{VAA} offset:{L_ACC}")
o("  s_waitcnt lgkmcnt(0)")
o(f"  v_add_f32 v{AC2}, v{AC2}, v{AC2+1}")
o("K2_FL_W:")
o(f"  ds_write_b32 v{VAA}, v{AC2} offset:{L_ACC}")
o("  s_branch K2_FL_C")
o("K2_FL_HEAD:")
o(f"  v_add_f32 v{AC2}, v{AC2}, v{AC2+2}")
o("  s_lshl_b32 s71, s5, 8")
o(f"  v_add_u32 v{VAA}, s71, v36")
o(f"  ds_write_b32 v{VAA}, v{AC2} offset:{L_HEAD}")
o("  s_mov_b32 s73, 0")
o("K2_FL_C:")
o("  s_add_u32 s68, s68, 1")
o("  s_add_u32 s69, s68, 1")
o("  v_readlane_b32 s70, v33, s69")
o("  s_waitcnt lgkmcnt(0)")
for j in range(4):
    o(f"  v_mov_b32 v{AC2+j}, 0")
o("  s_setpc_b64 s[76:77]")

o('.section .rodata,"a"')
for name, vg in (("mpnn_k1_kernel", 208), ("mpnn_k2_kernel", 128)):
    o(".p2align 6")
    o(f".amdhsa_kernel {name}")
    o(f"  .amdhsa_next_free_vgpr {vg}")
    o("  .amdhsa_next_free_sgpr 102")
    o(f"  .amdhsa_accum_offset {vg}")
    o("  .amdhsa_group_segment_fixed_size 0")
    o("  .amdhsa_kernarg_size 80")
    o("  .amdhsa_user_sgpr_count 2")
    o("  .amdhsa_user_sgpr_kernarg_segment_ptr 1")
    o("  .amdhsa_system_sgpr_workgroup_id_x 1")
    o(".end_amdhsa_kernel")

open(sys.argv[1] if len(sys.argv) > 1 else "standalone__edge_featured_mpnn_egc__graph.s", "w").write("\n".join(out) + "\n")
```

```python
import sys

N = 12500
E = 800000
NB = 256
BN = 49
PW = 250
CH = 3200
GW = 196
ROWS = 12544
KSEG = 48
T_OFF = 0
A_OFF = 4 << 20
U_OFF = 8 << 20
REC_OFF = 12 << 20
OFFT_OFF = 20 << 20
NLOG2E = 0xbfb8aa3b

import os
DBG = int(os.environ.get("DBG","0"))
EXP = os.environ.get("EXP","")
PRIO = int(os.environ.get("PRIO","1"))
P1, P2, P3 = [int(x) for x in os.environ.get("PTH","1,3,6").split(",")]
out = []
def stamp(i):
    if DBG:
        o(f"  s_memtime s[{80+2*i}:{81+2*i}]")
def o(s=""):
    out.append(s)

def srd(d, lo, hi, size):
    o(f"  s_mov_b32 s{d}, s{lo}")
    o(f"  s_and_b32 s{d+1}, s{hi}, 0xffff")
    o(f"  s_mov_b32 s{d+2}, {size}")
    o(f"  s_mov_b32 s{d+3}, 0x00020000")

def srd_off(d, lo, hi, off, size):
    o(f"  s_add_u32 s{d}, s{lo}, {off}")
    o(f"  s_addc_u32 s{d+1}, s{hi}, 0")
    o(f"  s_and_b32 s{d+1}, s{d+1}, 0xffff")
    o(f"  s_mov_b32 s{d+2}, {size}")
    o(f"  s_mov_b32 s{d+3}, 0x00020000")

def wave_scan(v, tmp=None):
    for sh in (1, 2, 4, 8):
        o("  s_nop 1")
        o(f"  v_add_u32_dpp v{v}, v{v}, v{v} row_shr:{sh} row_mask:0xf bank_mask:0xf")
    o("  s_nop 1")
    o(f"  v_add_u32_dpp v{v}, v{v}, v{v} row_bcast:15 row_mask:0xa bank_mask:0xf")
    o("  s_nop 1")
    o(f"  v_add_u32_dpp v{v}, v{v}, v{v} row_bcast:31 row_mask:0xc bank_mask:0xf")
    o("  s_nop 1")

K2_LDS = 128 * 1024
K1_LDS = 36 * 1024
o(f"; @launch kernel=mpnn_k1_kernel grid=({PW+GW},1,1) block=(512,1,1) lds={K1_LDS}")
o(f"; @launch kernel=mpnn_k2_kernel grid=({NB},1,1) block=(1024,1,1) lds={K2_LDS}")
o('.amdgcn_target "amdgcn-amd-amdhsa--gfx950"')
o(".text")

o(".globl mpnn_k1_kernel")
o(".p2align 8")
o(".type mpnn_k1_kernel,@function")
o("mpnn_k1_kernel:")
o(f"  s_cmp_ge_u32 s2, {PW+GW}")
o("  s_cbranch_scc1 K1_END")
stamp(0)
o("  s_load_dwordx8 s[8:15], s[0:1], 0")
o("  s_load_dwordx8 s[16:23], s[0:1], 32")
o("  s_load_dwordx2 s[24:25], s[0:1], 72")
o(f"  s_cmp_ge_u32 s2, {PW}")
o("  s_cbranch_scc1 K1_GEMM")

HIST = 0
OFFL = 1024
STG = 2048
o("  v_lshlrev_b32 v1, 4, v0")
o("  v_lshlrev_b32 v2, 3, v0")
o("  v_lshlrev_b32 v3, 2, v0")
o("  v_mov_b32 v4, 0")
o(f"  ds_write_b32 v3, v4 offset:{HIST}")
o(f"  s_mul_i32 s50, s2, {CH*4}")
o(f"  s_mul_i32 s54, s2, {CH*2}")
o(f"  s_add_u32 s51, s50, 6400")
o(f"  s_add_u32 s55, s54, 3200")
o("  s_mov_b32 s58, 21400")
o("  s_mov_b32 s59, -49")
o("  v_cmp_gt_u32 vcc, 400, v0")
o("  s_waitcnt lgkmcnt(0)")
srd(28, 14, 15, E*4)
srd(32, 12, 13, E*4)
srd(36, 10, 11, E*2)
o("  s_and_saveexec_b64 s[62:63], vcc")
o("  s_cbranch_execz K1_P_L0")
vD, vS, vE = 8, 16, 24
for r in range(2):
    o(f"  buffer_load_dwordx4 v[{vD+4*r}:{vD+4*r+3}], v1, s[28:31], s{50+r} offen")
for r in range(2):
    o(f"  buffer_load_dwordx4 v[{vS+4*r}:{vS+4*r+3}], v1, s[32:35], s{50+r} offen")
for r in range(2):
    o(f"  buffer_load_dwordx2 v[{vE+2*r}:{vE+2*r+1}], v2, s[36:39], s{54+r} offen")
o("K1_P_L0:")
o(f"  s_mul_i32 s60, s2, {CH*8}")
o(f"  s_add_u32 s60, s60, {REC_OFF}")
o("  s_add_u32 s40, s24, s60")
o("  s_addc_u32 s41, s25, 0")
o("  s_and_b32 s41, s41, 0xffff")
o(f"  s_mov_b32 s42, {CH*8}")
o("  s_mov_b32 s43, 0x00020000")
srd_off(44, 24, 25, OFFT_OFF, 257*1024)
o("  v_mov_b32 v5, 1")
o("  s_mov_b32 s61, 0xffff0000")
o("  s_barrier")
vA, vR, vL = 28, 36, 44
o("  s_waitcnt vmcnt(4)")
stamp(1)
for k in range(8):
    o(f"  v_mul_u32_u24 v6, s58, v{vD+k}")
    o(f"  v_lshrrev_b32 v6, 20, v6")
    o(f"  v_mad_i32_i24 v{vL+2*k+1}, v6, s59, v{vD+k}")
    o(f"  v_and_b32 v7, 7, v6")
    o(f"  v_lshrrev_b32 v6, 3, v6")
    o(f"  v_lshl_or_b32 v6, v7, 5, v6")
    o(f"  v_lshlrev_b32 v{vA+k}, 2, v6")
    o(f"  ds_add_rtn_u32 v{vR+k}, v{vA+k}, v5 offset:{HIST}")
o("  s_waitcnt lgkmcnt(0)")
o("  s_barrier")
stamp(2)
o("  s_waitcnt vmcnt(0)")
for k in range(8):
    r, j = k >> 2, k & 3
    ereg = vE + 2*r + (j >> 1)
    if j & 1 == 0:
        o(f"  v_lshl_or_b32 v{vL+2*k}, v{ereg}, 16, v{vS+k}")
    else:
        o(f"  v_and_or_b32 v{vL+2*k}, v{ereg}, s61, v{vS+k}")
o("  s_mov_b64 exec, s[62:63]")
o("  v_cmp_gt_u32 vcc, 64, v0")
o("  s_and_saveexec_b64 s[64:65], vcc")
o("  s_cbranch_execz K1_P_SCANDONE")
o(f"  ds_read_b128 v[60:63], v1 offset:{HIST}")
o("  s_waitcnt lgkmcnt(0)")
o("  v_add_u32 v65, v60, v61")
o("  v_add_u32 v66, v65, v62")
o("  v_add_u32 v67, v66, v63")
o("  v_mov_b32 v68, v67")
wave_scan(68)
o("  v_sub_u32 v68, v68, v67")
o("  v_add_u32 v69, v68, v60")
o("  v_add_u32 v70, v68, v65")
o("  v_add_u32 v71, v68, v66")
o(f"  ds_write_b128 v1, v[68:71] offset:{OFFL}")
o("  v_lshlrev_b32 v64, 12, v0")
o("  s_lshl_b32 s66, s2, 2")
for j in range(4):
    o(f"  buffer_store_dword v{68+j}, v64, s[44:47], s66 offen offset:{j*1024}")
o(f"  v_mov_b32 v72, {CH}")
o(f"  v_mov_b32 v73, {256*1024}")
o("  buffer_store_dword v72, v73, s[44:47], s66 offen")
o("K1_P_SCANDONE:")
o("  s_mov_b64 exec, s[64:65]")
o("  v_cmp_gt_u32 vcc, 400, v0")
o("  s_and_saveexec_b64 s[62:63], vcc")
o("  s_waitcnt lgkmcnt(0)")
o("  s_barrier")
stamp(3)
for k in range(8):
    o(f"  ds_read_b32 v{vD+k}, v{vA+k} offset:{OFFL}")
o("  s_waitcnt lgkmcnt(0)")
for k in range(8):
    o(f"  v_add_u32 v6, v{vD+k}, v{vR+k}")
    o(f"  v_lshlrev_b32 v6, 3, v6")
    o(f"  ds_write_b64 v6, v[{vL+2*k}:{vL+2*k+1}] offset:{STG}")
o("  s_mov_b64 exec, s[62:63]")
o("  s_waitcnt lgkmcnt(0)")
o("  s_barrier")
stamp(4)
for i in range(4):
    o(f"  ds_read_b128 v[{8+4*i}:{8+4*i+3}], v1 offset:{STG+8192*i}")
o("  v_add_u32 v2, 0x2000, v1")
o("  v_add_u32 v3, 0x4000, v1")
o("  v_add_u32 v4, 0x6000, v1")
for i in range(4):
    o(f"  s_waitcnt lgkmcnt({3-i})")
    o(f"  buffer_store_dwordx4 v[{8+4*i}:{8+4*i+3}], v{1+i}, s[40:43], 0 offen")
if DBG:
    o("  s_waitcnt vmcnt(0)")
    stamp(5)
    o("  s_waitcnt lgkmcnt(0)")
    o("  s_cmp_lg_u32 s2, {}".format(7))
    o("  s_cbranch_scc1 K1_END")
    o("  v_cmp_eq_u32 vcc, 0, v0")
    o("  s_and_saveexec_b64 s[70:71], vcc")
    o("  s_cbranch_execz K1_END")
    o("  s_load_dwordx2 s[72:73], s[0:1], 64")
    o("  s_waitcnt lgkmcnt(0)")
    srd(76, 72, 73, 256)
    o("  v_mov_b32 v1, 0")
    for i in range(1, 5+1):
        o(f"  s_sub_u32 s73, s{80+2*i}, s80")
        o(f"  v_mov_b32 v2, s73")
        o(f"  buffer_store_dword v2, v1, s[76:79], 0 offen offset:{4*i}")
o("  s_endpgm")

o("K1_GEMM:")
o(f"  s_sub_u32 s3, s2, {PW}")
o("  v_lshrrev_b32 v1, 6, v0")
o("  s_nop 0")
o("  v_readfirstlane_b32 s5, v1")
o("  v_and_b32 v2, 63, v0")
o("  v_and_b32 v3, 31, v2")
o("  v_lshrrev_b32 v4, 5, v2")
o("  v_lshlrev_b32 v10, 4, v0")
o("  s_and_b32 s6, s5, 1")
o("  s_bfe_u32 s7, s5, 0x10001")
o("  s_lshr_b32 s26, s5, 2")
o("  s_lshl_b32 s4, s3, 1")
o("  s_add_u32 s4, s4, s26")
o("  s_lshl_b32 s4, s4, 5")
o("  s_waitcnt lgkmcnt(0)")
srd(28, 20, 21, 128*128)
srd(32, 18, 19, 8192)
srd(48, 16, 17, 8192)
srd(36, 8, 9, N*128)
XF = 16
WT = 32
WF = 48
AC = 80
o("  s_mov_b32 s26, 8192")
o(f"  buffer_load_dwordx4 v[{WT}:{WT+3}], v10, s[28:31], 0 offen")
o(f"  buffer_load_dwordx4 v[{WT+4}:{WT+7}], v10, s[28:31], s26 offen")
o(f"  buffer_load_dwordx4 v[{WT+8}:{WT+11}], v10, s[32:35], 0 offen")
o(f"  buffer_load_dwordx4 v[{WT+12}:{WT+15}], v10, s[48:51], 0 offen")
o("  v_add_u32 v7, s4, v3")
o("  v_lshlrev_b32 v7, 7, v7")
o("  v_lshl_add_u32 v7, v4, 4, v7")
for ks in range(4):
    o(f"  buffer_load_dwordx4 v[{XF+ks*4}:{XF+ks*4+3}], v7, s[36:39], 0 offen offset:{ks*32}")
o("  s_cmp_eq_u32 s7, 0")
o(f"  s_cselect_b32 s26, {T_OFF}, {A_OFF}")
o("  s_add_u32 s40, s24, s26")
o("  s_addc_u32 s41, s25, 0")
o("  s_and_b32 s41, s41, 0xffff")
o(f"  s_mov_b32 s42, {ROWS*256}")
o("  s_mov_b32 s43, 0x00020000")
srd_off(44, 24, 25, U_OFF, ROWS*256)
o("  v_lshlrev_b32 v5, 10, v4")
o("  v_bfe_u32 v6, v2, 2, 2")
o("  v_lshl_add_u32 v5, v6, 7, v5")
o("  v_bfe_u32 v6, v2, 4, 1")
o("  v_lshl_add_u32 v5, v6, 5, v5")
o("  v_and_b32 v6, 3, v2")
o("  v_lshl_add_u32 v5, v6, 3, v5")
o("  s_lshl_b32 s26, s6, 6")
o("  s_lshl_b32 s27, s7, 14")
o("  s_add_u32 s26, s26, s27")
o("  v_add_u32 v5, s26, v5")
for i in range(32):
    o(f"  v_mov_b32 v{AC+i}, 0")
o("  v_lshl_add_u32 v9, v4, 2, s4")
o("  v_lshlrev_b32 v9, 8, v9")
o("  v_lshl_add_u32 v9, v3, 2, v9")
o("  s_lshl_b32 s26, s6, 7")
o("  v_add_u32 v9, s26, v9")
for q in range(4):
    o(f"  s_mov_b32 s{64+q}, {(8*q)*256}")
o("  v_mov_b32 v12, 0x71800000")
o("  v_mov_b32 v11, 0xf1800000")
o("  s_waitcnt vmcnt(4)")
for idx, off in enumerate((16384, 0, 8192, 24576)):
    o(f"  ds_write_b128 v10, v[{WT+4*idx}:{WT+4*idx+3}] offset:{off}")
o("  s_waitcnt lgkmcnt(0)")
o("  s_barrier")
for m in range(2):
    for ks in range(4):
        for h in range(2):
            f = WF+m*16+ks*4+2*h
            o(f"  ds_read_b64_tr_b16 v[{f}:{f+1}], v5 offset:{m*8192 + ks*2048 + h*512}")
o("  s_waitcnt vmcnt(0) lgkmcnt(0)")
stamp(1)
for m in range(2):
    for ks in range(4):
        a = XF+ks*4
        b = WF+m*16+ks*4
        c = AC+m*16
        o(f"  v_mfma_f32_32x32x16_bf16 v[{c}:{c+15}], v[{a}:{a+3}], v[{b}:{b+3}], v[{c}:{c+15}]")
o("  s_nop 15")
o("  s_nop 3")
stamp(2)
o("  s_cmp_eq_u32 s7, 0")
o("  s_cbranch_scc0 K1_G_AU")
for i in range(16):
    a1 = AC+i
    a2 = AC+16+i
    o(f"  v_mul_f32 v13, {NLOG2E:#x}, v{a1}")
    o(f"  v_med3_f32 v13, v13, v11, v12")
    o(f"  v_cvt_pk_bf16_f32 v13, v13, v13")
    o(f"  v_and_b32 v13, 0xffff, v13")
    o(f"  v_and_b32 v14, 0x7fffffff, v{a2}")
    o(f"  v_and_b32 v15, 0x80000000, v{a2}")
    o(f"  v_sub_u32 v14, v14, v13")
    o(f"  v_add_u32 v14, 0x8000, v14")
    o(f"  v_max_i32 v14, 0, v14")
    o(f"  v_min_i32 v14, 0x7f7fffff, v14")
    o(f"  v_and_b32 v14, 0xffff0000, v14")
    o(f"  v_or3_b32 v{a1}, v14, v15, v13")
    o(f"  buffer_store_dword v{a1}, v9, s[40:43], s{64+(i>>2)} offen offset:{(i&3)*256}")
if DBG:
    o("  s_waitcnt vmcnt(0)")
    stamp(3)
    o("  s_waitcnt lgkmcnt(0)")
    o("  s_cmp_lg_u32 s2, {}".format(PW+7))
    o("  s_cbranch_scc1 K1_END")
    o("  v_cmp_eq_u32 vcc, 0, v0")
    o("  s_and_saveexec_b64 s[70:71], vcc")
    o("  s_cbranch_execz K1_END")
    o("  s_load_dwordx2 s[72:73], s[0:1], 64")
    o("  s_waitcnt lgkmcnt(0)")
    srd(76, 72, 73, 256)
    o("  v_mov_b32 v1, 64")
    for i in range(1, 3+1):
        o(f"  s_sub_u32 s73, s{80+2*i}, s80")
        o(f"  v_mov_b32 v2, s73")
        o(f"  buffer_store_dword v2, v1, s[76:79], 0 offen offset:{4*i}")
o("  s_endpgm")
o("K1_G_AU:")
for i in range(16):
    a1 = AC+i
    a2 = AC+16+i
    o(f"  v_mul_f32 v{a1}, {NLOG2E:#x}, v{a1}")
    o(f"  buffer_store_dword v{a1}, v9, s[40:43], s{64+(i>>2)} offen offset:{(i&3)*256}")
    o(f"  buffer_store_dword v{a2}, v9, s[44:47], s{64+(i>>2)} offen offset:{(i&3)*256}")
o("K1_END:")
o("  s_endpgm")

L_HIST = 0
L_GOFF = 256
L_MISC = 512
L_HN = 576
L_HEAD = 1024
L_ACC = L_HEAD + 16*256
L_A = L_ACC + BN*256
L_SORT = L_A + 52*256
NIT = KSEG // 4
o(".globl mpnn_k2_kernel")
o(".p2align 8")
o(".type mpnn_k2_kernel,@function")
o("mpnn_k2_kernel:")
o(f"  s_cmp_ge_u32 s2, {NB}")
o("  s_cbranch_scc1 K2_END")
stamp(0)
o("  s_load_dwordx4 s[8:11], s[0:1], 48")
o("  s_load_dwordx2 s[12:13], s[0:1], 64")
o("  s_load_dwordx2 s[24:25], s[0:1], 72")
o("  v_lshrrev_b32 v1, 6, v0")
o("  v_and_b32 v2, 63, v0")
o("  v_readfirstlane_b32 s5, v1")
o("  v_lshlrev_b32 v3, 4, v0")
o("  v_lshrrev_b32 v4, 3, v0")
o("  v_and_b32 v5, 7, v0")
o("  v_lshlrev_b32 v5, 1, v5")
o("  v_and_b32 v6, 15, v2")
o("  v_lshlrev_b32 v6, 4, v6")
o("  v_lshlrev_b32 v7, 2, v4")
o("  s_and_b32 s7, s2, 7")
o("  s_lshl_b32 s7, s7, 5")
o("  s_lshr_b32 s58, s2, 3")
o("  s_or_b32 s7, s7, s58")
o("  s_lshl_b32 s7, s7, 10")
o(f"  s_mul_i32 s6, s2, {BN*256}")
o("  s_waitcnt lgkmcnt(0)")
srd_off(28, 24, 25, OFFT_OFF, 257*1024)
o("  buffer_load_dword v8, v7, s[28:31], s7 offen")
o("  buffer_load_dword v9, v7, s[28:31], s7 offen offset:1024")
o("  buffer_load_dword v24, v7, s[28:31], s7 offen offset:512")
o("  buffer_load_dword v25, v7, s[28:31], s7 offen offset:1536")
srd_off(32, 24, 25, REC_OFF, PW*CH*8)
srd_off(36, 24, 25, T_OFF, ROWS*256)
srd_off(40, 24, 25, A_OFF, N*256)
srd_off(44, 24, 25, U_OFF, N*256)
srd(48, 8, 9, 129*128)
srd(52, 10, 11, N*128)
o("  buffer_load_dwordx4 v[12:15], v3, s[40:43], s6 offen")
o("  v_lshrrev_b32 v10, 1, v6")
o(f"  v_add_u32 v10, {128*128}, v10")
o("  buffer_load_dwordx2 v[20:21], v10, s[48:51], 0 offen")
o("  v_mov_b32 v100, 0")
o("  v_mov_b32 v101, 0")
o("  v_mov_b32 v102, 0")
o("  v_mov_b32 v103, 0")
o("  s_cmp_lg_u32 s5, 0")
o("  s_cbranch_scc1 K2_Z2")
o(f"  ds_write_b128 v3, v[100:103] offset:0")
o("K2_Z2:")
o("  v_lshrrev_b32 v10, 4, v2")
o("  v_and_b32 v11, 1, v10")
o("  v_lshlrev_b32 v11, 3, v11")
o("  v_lshrrev_b32 v10, 1, v10")
o("  v_lshl_add_u32 v11, v10, 2, v11")
o("  v_add_u32 v36, v11, v6")
o("  v_mov_b32 v27, 1")
o("  v_mov_b32 v32, 0x3f80")
o("  s_mov_b32 s60, 0")
o(f"  v_mov_b32 v11, {CH*8}")
o("  v_add_u32 v10, 128, v4")
o("  s_waitcnt vmcnt(2)")
stamp(1)
o("  v_sub_u32 v9, v9, v8")
o("  v_sub_u32 v25, v25, v24")
o(f"  v_cmp_gt_u32 vcc, {PW}, v10")
o("  v_add_u32 v8, v8, v5")
o("  v_add_u32 v24, v24, v5")
o("  v_cndmask_b32 v25, 0, v25, vcc")
o(f"  v_min_u32 v9, {CH}, v9")
o(f"  v_min_u32 v25, {CH}, v25")
o("  v_lshlrev_b32 v8, 3, v8")
o("  v_lshlrev_b32 v24, 3, v24")
o("  v_mad_u32_u24 v8, v4, v11, v8")
o("  v_mad_u32_u24 v24, v10, v11, v24")
o("  v_max_u32 v23, v9, v25")
o("  v_sub_u32 v26, v9, v5")
o("  v_sub_u32 v25, v25, v5")
RL = 40
RK = 64
REM = (26, 25)
ADR = (8, 24)
NI = KSEG // 16
o("K2_ROUND:")
for p in range(2):
    for it in range(NI):
        q = p*NI + it
        o(f"  v_cmpx_lt_i32 vcc, {16*it}, v{REM[p]}")
        o(f"  s_cbranch_execz K2_LD_DONE{p}")
        o(f"  buffer_load_dwordx4 v[{RL+4*q}:{RL+4*q+3}], v{ADR[p]}, s[32:35], 0 offen offset:{128*it}")
    o(f"K2_LD_DONE{p}:")
    o("  s_mov_b64 exec, -1")
o("  s_cmp_lg_u32 s60, 0")
o("  s_cbranch_scc1 K2_SETUP_SKIP")
o("  s_waitcnt lgkmcnt(0)")
o("  s_barrier")
o(f"  v_mov_b32 v11, {L_MISC}")
o("  ds_max_u32 v11, v23")
o("  s_waitcnt vmcnt(0)")
o("  v_cmp_gt_u32 vcc, 784, v0")
o("  s_and_saveexec_b64 s[56:57], vcc")
o("  s_cbranch_execz K2_Z3")
o(f"  ds_write_b128 v3, v[12:15] offset:{L_A}")
o("K2_Z3:")
o("  s_mov_b64 exec, s[56:57]")
o("  v_lshlrev_b32 v28, 16, v20")
o("  v_and_b32 v29, 0xffff0000, v20")
o("  v_lshlrev_b32 v30, 16, v21")
o("  v_and_b32 v31, 0xffff0000, v21")
for j in range(4):
    o(f"  v_mul_f32 v{28+j}, {NLOG2E:#x}, v{28+j}")
o("  s_branch K2_SETUP_DONE")
o("K2_SETUP_SKIP:")
o("  s_waitcnt lgkmcnt(0)")
o("  s_barrier")
o("  s_waitcnt vmcnt(0)")
o("K2_SETUP_DONE:")
stamp(2)
def rec_loop(tag, body):
    for p in range(2):
        for it in range(NI):
            for h in range(2):
                q = p*NI + it
                o(f"  v_cmpx_lt_i32 vcc, {16*it+h}, v{REM[p]}")
                o(f"  s_cbranch_execz K2_{tag}_DONE{p}")
                body(RL+4*q+2*h, 2*q+h)
        o(f"K2_{tag}_DONE{p}:")
        o("  s_mov_b64 exec, -1")
def b_at(r, i):
    o(f"  v_lshlrev_b32 v{r+1}, 2, v{r+1}")
    o(f"  ds_add_rtn_u32 v{RK+i}, v{r+1}, v27 offset:{L_HIST}")
rec_loop("AT", b_at)
o("  s_waitcnt lgkmcnt(0)")
o("  s_barrier")
o("  s_cmp_lg_u32 s60, 0")
o("  s_cbranch_scc1 K2_PF_SKIP")
o("  s_lshr_b32 s58, s2, 3")
o(f"  s_mul_i32 s58, s58, {392*256}")
for i in range(7 if EXP == "prefetch" else 0):
    o(f"  buffer_load_dwordx4 v[104:107], v3, s[36:39], s58 offen")
    o(f"  s_add_u32 s58, s58, 16384")
o("  buffer_load_dwordx4 v[16:19], v3, s[44:47], s6 offen")

o("K2_PF_SKIP:")
o("  s_cmp_lg_u32 s5, 0")
o("  s_cbranch_scc1 K2_SCAN_DONE")
o("  v_lshlrev_b32 v11, 2, v2")
o(f"  ds_read_b32 v33, v11 offset:{L_HIST}")
o("  s_waitcnt lgkmcnt(0)")
o("  v_add_u32 v34, 3, v33")
o("  v_and_b32 v34, -4, v34")
o("  v_max_u32 v34, 4, v34")
o(f"  v_cmp_gt_u32 vcc, {BN}, v2")
o("  s_nop 1")
o("  v_cndmask_b32 v34, 0, v34, vcc")
o("  v_mov_b32 v35, v34")
wave_scan(35)
o("  v_readlane_b32 s61, v35, 63")
o("  v_sub_u32 v35, v35, v34")
o("  s_add_u32 s62, s61, 15")
o("  s_and_b32 s62, s62, -16")
o("  v_mov_b32 v37, s62")
o(f"  v_cmp_gt_u32 vcc, {BN}, v2")
o("  s_nop 1")
o("  v_cndmask_b32 v37, v37, v35, vcc")
o(f"  ds_write_b32 v11, v37 offset:{L_GOFF}")
o(f"  v_mov_b32 v38, {N*256}")
o("  v_mov_b32 v39, 0")
o("  v_add_u32 v37, v35, v33")
o("  v_lshlrev_b32 v37, 3, v37")
o("  v_sub_u32 v34, v34, v33")
for j in range(4):
    o(f"  v_cmpx_lt_u32 vcc, {j}, v34")
    o(f"  ds_write_b64 v37, v[38:39] offset:{L_SORT+8*j}")
o("  s_mov_b64 exec, -1")
o("  v_add_u32 v37, s61, v2")
o("  v_lshlrev_b32 v37, 3, v37")
o("  v_cmpx_gt_u32 vcc, 16, v2")
o(f"  ds_write_b64 v37, v[38:39] offset:{L_SORT}")
o("  s_mov_b64 exec, -1")
o("  s_waitcnt lgkmcnt(0)")
o("K2_SCAN_DONE:")
o("  s_barrier")
def b_rd(r, i):
    o(f"  ds_read_b32 v{76+i}, v{r+1} offset:{L_GOFF}")
rec_loop("SC1", b_rd)
o("  v_lshlrev_b32 v11, 2, v2")
o(f"  ds_read_b32 v33, v11 offset:{L_GOFF}")
o("  s_waitcnt lgkmcnt(0)")
def b_wr(r, i):
    o(f"  v_add_u32 v11, v{76+i}, v{RK+i}")
    o(f"  v_lshlrev_b32 v11, 3, v11")
    o(f"  v_and_b32 v{r+1}, 0xffff0000, v{r}")
    o(f"  v_and_b32 v{r}, 0x3fff, v{r}")
    o(f"  v_lshlrev_b32 v{r}, 8, v{r}")
    o(f"  ds_write_b64 v11, v[{r}:{r+1}] offset:{L_SORT}")
rec_loop("SC2", b_wr)
o("  v_readlane_b32 s62, v33, 49")
o("  s_lshr_b32 s63, s62, 4")
o("  s_mul_i32 s64, s63, s5")
o("  s_lshr_b32 s64, s64, 4")
o("  s_add_u32 s65, s5, 1")
o("  s_mul_i32 s65, s63, s65")
o("  s_lshr_b32 s65, s65, 4")
o("  s_lshl_b32 s66, s64, 4")
o("  s_lshl_b32 s67, s65, 4")
o(f"  v_cmp_gt_u32 s[56:57], {BN}, v2")
o("  v_cmp_ge_u32 vcc, s66, v33")
o("  s_and_b64 vcc, vcc, s[56:57]")
o("  s_bcnt1_i32_b64 s68, vcc")
o("  s_sub_u32 s68, s68, 1")
o("  s_add_u32 s69, s68, 1")
o("  v_readlane_b32 s70, v33, s69")
o("  v_readlane_b32 s72, v33, s68")
o("  s_cmp_lg_u32 s72, s66")
o("  s_cselect_b32 s73, 1, 0")
o("  s_cmp_ge_u32 s64, s65")
o("  s_cselect_b32 s73, 0, s73")
o("  s_cmp_lg_u32 s73, 0")
o("  s_cselect_b32 s74, s68, -1")
o("  v_mov_b32 v11, s74")
o("  s_lshl_b32 s74, s5, 2")
o("  v_mov_b32 v10, s74")
o(f"  ds_write_b32 v10, v11 offset:{L_HN}")
o("  s_waitcnt lgkmcnt(0)")
o("  s_barrier")
stamp(3)
if DBG:
    o("  s_memrealtime s[94:95]")
o("  s_cmp_ge_u32 s64, s65")
o("  s_cbranch_scc1 K2_MAIN_DONE")
AV = 40
AC2 = 44
RB = 48
WB = 72
TT = 120
NBUF = 3
VRA = 34
VAA = 35
o("  s_lshl_b32 s71, s68, 8")
o(f"  v_add_u32 v{VAA}, s71, v6")
o(f"  ds_read_b128 v[{AV}:{AV+3}], v{VAA} offset:{L_A}")
o("  v_lshrrev_b32 v11, 4, v2")
o("  v_lshlrev_b32 v11, 3, v11")
o("  s_lshl_b32 s71, s66, 3")
o(f"  v_add_u32 v{VRA}, s71, v11")
for j in range(4):
    o(f"  v_mov_b32 v{AC2+j}, 0")
o("  v_mov_b32 v38, 1.0")
o("  v_mov_b32 v39, 1.0")
def rec_read(bf):
    for g in range(4):
        o(f"  ds_read_b64 v[{RB+bf*8+g*2}:{RB+bf*8+g*2+1}], v{VRA} offset:{L_SORT+32*g}")
    o(f"  v_add_u32 v{VRA}, 128, v{VRA}")
def issue(bf):
    for g in range(4):
        if EXP == "samerow":
            o(f"  v_mov_b32 v{RB+bf*8+g*2}, v6")
        else:
            o(f"  v_add_u32 v{RB+bf*8+g*2}, v{RB+bf*8+g*2}, v6")
        if EXP != "noload":
            o(f"  buffer_load_dwordx4 v[{WB+bf*16+g*4}:{WB+bf*16+g*4+3}], v{RB+bf*8+g*2}, s[36:39], 0 offen")
uid = [0]
def compute(bf):
    for g in range(4):
        r = RB+bf*8+g*2
        w = WB+bf*16+g*4
        t = TT + (g & 1)*4
        o(f"  s_waitcnt vmcnt({4*(NBUF-1) + 3 - g})")
        for j in (0, 2):
            o(f"  v_pk_fma_f32 v[{t+j}:{t+j+1}], v[{r}:{r+1}], v[{28+j}:{29+j}], v[{AV+j}:{AV+j+1}] op_sel:[1,0,0] op_sel_hi:[1,1,1]")
        o(f"  ds_read_b64 v[{r}:{r+1}], v{VRA} offset:{L_SORT+32*g}")
        for j in range(4):
            o(f"  v_dot2_f32_bf16 v{t+j}, v{w+j}, v32, v{t+j}")
        if EXP != "nocompute":
            for j in range(4):
                o(f"  v_exp_f32 v{t+j}, v{t+j}")
            o("  s_nop 0")
            for j in (0, 2):
                o(f"  v_pk_add_f32 v[{t+j}:{t+j+1}], v[{t+j}:{t+j+1}], v[38:39]")
            for j in range(4):
                o(f"  v_rcp_f32 v{t+j}, v{t+j}")
        o("  s_add_u32 s66, s66, 4")
        for j in (0, 2):
            o(f"  v_pk_fma_f32 v[{AC2+j}:{AC2+j+1}], v[{t+j}:{t+j+1}], v[{w+j}:{w+j+1}], v[{AC2+j}:{AC2+j+1}]")
        uid[0] += 1
        u = uid[0]
        o("  s_cmp_lg_u32 s66, s70")
        o(f"  s_cbranch_scc1 K2_NF{u}")
        o("  s_getpc_b64 s[76:77]")
        o("  s_add_u32 s76, s76, 12")
        o("  s_addc_u32 s77, s77, 0")
        o("  s_branch K2_FLUSH")
        o(f"K2_NF{u}:")
    o(f"  v_add_u32 v{VRA}, 128, v{VRA}")
for b in range(NBUF):
    rec_read(b)
o("  s_waitcnt lgkmcnt(0)")
for b in range(NBUF-1):
    issue(b)
o("  s_setprio 3")
pid = [0]
def prio_update():
    if not PRIO:
        return
    pid[0] += 1
    u = pid[0]
    o("  s_sub_u32 s78, s67, s66")
    o(f"  s_cmp_gt_u32 s78, {16*P3}")
    o(f"  s_cbranch_scc1 K2_PD{u}")
    o(f"  s_cmp_gt_u32 s78, {16*P2}")
    o(f"  s_cbranch_scc1 K2_PA{u}")
    o(f"  s_cmp_gt_u32 s78, {16*P1}")
    o(f"  s_cbranch_scc1 K2_PB{u}")
    o("  s_setprio 0")
    o(f"  s_branch K2_PD{u}")
    o(f"K2_PA{u}:")
    o("  s_setprio 2")
    o(f"  s_branch K2_PD{u}")
    o(f"K2_PB{u}:")
    o("  s_setprio 1")
    o(f"K2_PD{u}:")
o("K2_LOOP:")
for b in range(NBUF):
    o("  s_waitcnt lgkmcnt(0)")
    issue((b + NBUF - 1) % NBUF)
    compute(b)
    prio_update()
    if b < NBUF-1:
        o("  s_cmp_ge_u32 s66, s67")
        o("  s_cbranch_scc1 K2_LOOP_EXIT")
o("  s_cmp_lt_u32 s66, s67")
o("  s_cbranch_scc1 K2_LOOP")
o("K2_LOOP_EXIT:")
o("  s_setprio 0")
o("  v_readlane_b32 s72, v33, s68")
o("  s_cmp_ge_u32 s72, s67")
o("  s_cbranch_scc1 K2_NOFINAL")
o("  s_getpc_b64 s[76:77]")
o("  s_add_u32 s76, s76, 12")
o("  s_addc_u32 s77, s77, 0")
o("  s_branch K2_FLUSH")
o("K2_NOFINAL:")
o("  s_waitcnt vmcnt(0) lgkmcnt(0)")
o("K2_MAIN_DONE:")
stamp(4)
o(f"  v_mov_b32 v11, {L_MISC}")
o("  ds_read_b32 v34, v11")
o("  s_barrier")
o("  v_lshlrev_b32 v10, 2, v2")
o(f"  ds_read_b32 v35, v10 offset:{L_HN}")
o(f"  ds_read_b128 v[12:15], v3 offset:{L_ACC}")
o("  v_lshrrev_b32 v10, 4, v0")
o("  s_waitcnt lgkmcnt(0)")
o("  v_readfirstlane_b32 s61, v34")
for w in range(16):
    o(f"  v_readlane_b32 s72, v35, {w}")
    o("  s_nop 1")
    o("  v_cmpx_eq_u32 vcc, s72, v10")
    o(f"  s_cbranch_execz K2_CB{w}")
    o(f"  ds_read_b128 v[20:23], v6 offset:{L_HEAD+256*w}")
    o("  s_waitcnt lgkmcnt(0)")
    for j in range(4):
        o(f"  v_add_f32 v{12+j}, v{12+j}, v{20+j}")
    o(f"K2_CB{w}:")
    o("  s_mov_b64 exec, -1")
o(f"  s_add_u32 s60, s60, {KSEG}")
o("  s_cmp_ge_u32 s60, s61")
o("  s_cbranch_scc1 K2_FINAL")
o("  v_cmp_gt_u32 vcc, 784, v0")
o("  s_and_saveexec_b64 s[56:57], vcc")
o("  s_cbranch_execz K2_NR0")
o(f"  ds_write_b128 v3, v[12:15] offset:{L_ACC}")
o("K2_NR0:")
o("  s_mov_b64 exec, s[56:57]")
o("  s_cmp_lg_u32 s5, 0")
o("  s_cbranch_scc1 K2_NR1")
o("  v_lshlrev_b32 v11, 2, v2")
o("  v_mov_b32 v34, 0")
o(f"  ds_write_b32 v11, v34 offset:{L_HIST}")
o("K2_NR1:")
o(f"  v_subrev_u32 v26, {KSEG}, v26")
o(f"  v_subrev_u32 v25, {KSEG}, v25")
o(f"  v_add_u32 v8, {KSEG*8}, v8")
o(f"  v_add_u32 v24, {KSEG*8}, v24")
o("  s_branch K2_ROUND")
o("K2_FINAL:")
stamp(5)
if DBG:
    o("  s_memrealtime s[96:97]")
o("  v_cmp_gt_u32 vcc, 784, v0")
o("  s_and_saveexec_b64 s[56:57], vcc")
o("  s_cbranch_execz K2_FIN2")
o("  v_lshlrev_b32 v11, 3, v0")
o(f"  s_mul_i32 s6, s2, {BN*128}")
for j in range(4):
    o(f"  v_add_f32 v{12+j}, v{12+j}, v{16+j}")
for j in range(4):
    o(f"  v_mul_f32 v{20+j}, {NLOG2E:#x}, v{12+j}")
for j in range(4):
    o(f"  v_exp_f32 v{20+j}, v{20+j}")
for j in range(4):
    o(f"  v_add_f32 v{20+j}, 1.0, v{20+j}")
for j in range(4):
    o(f"  v_rcp_f32 v{20+j}, v{20+j}")
o("  s_nop 0")
for j in range(4):
    o(f"  v_mul_f32 v{12+j}, v{12+j}, v{20+j}")
o("  v_cvt_pk_bf16_f32 v12, v12, v13")
o("  v_cvt_pk_bf16_f32 v13, v14, v15")
o("  buffer_store_dwordx2 v[12:13], v11, s[52:55], s6 offen")
o("K2_FIN2:")
o("  s_mov_b64 exec, -1")
if DBG:
    stamp(6)
    o("  s_waitcnt lgkmcnt(0)")
    o("  s_cmp_lg_u32 s2, 5")
    o("  s_cbranch_scc1 K2_END")
    o("  s_lshl_b32 s72, s5, 4")
    srd(76, 12, 13, 256)
    o("  v_mov_b32 v1, s72")
    for n, i in enumerate((2, 3, 4, 5)):
        o(f"  s_sub_u32 s73, s{80+2*i}, s80")
        o(f"  v_mov_b32 v2, s73")
        o(f"  buffer_store_dword v2, v1, s[76:79], 0 offen offset:{4*n}")
o("K2_END:")
o("  s_endpgm")
o("K2_FLUSH:")
o("  s_nop 1")
o(f"  v_permlane32_swap_b32 v{AC2}, v{AC2+1}")
o(f"  v_permlane32_swap_b32 v{AC2+2}, v{AC2+3}")
o("  s_lshl_b32 s71, s68, 8")
o(f"  v_add_u32 v{VAA}, s71, v6")
o(f"  v_add_f32 v{AC2}, v{AC2}, v{AC2+1}")
o(f"  v_add_f32 v{AC2+2}, v{AC2+2}, v{AC2+3}")
o(f"  ds_read_b128 v[{AV}:{AV+3}], v{VAA} offset:{L_A+256}")
o(f"  v_add_u32 v{VAA}, s71, v36")
o(f"  v_permlane16_swap_b32 v{AC2}, v{AC2+2}")
o("  s_cmp_lg_u32 s73, 0")
o("  s_cbranch_scc1 K2_FL_HEAD")
o(f"  v_add_f32 v{AC2}, v{AC2}, v{AC2+2}")
o("  s_cmp_eq_u32 s60, 0")
o("  s_cbranch_scc1 K2_FL_W")
o(f"  ds_read_b32 v{AC2+1}, v{VAA} offset:{L_ACC}")
o("  s_waitcnt lgkmcnt(0)")
o(f"  v_add_f32 v{AC2}, v{AC2}, v{AC2+1}")
o("K2_FL_W:")
o(f"  ds_write_b32 v{VAA}, v{AC2} offset:{L_ACC}")
o("  s_branch K2_FL_C")
o("K2_FL_HEAD:")
o(f"  v_add_f32 v{AC2}, v{AC2}, v{AC2+2}")
o("  s_lshl_b32 s71, s5, 8")
o(f"  v_add_u32 v{VAA}, s71, v36")
o(f"  ds_write_b32 v{VAA}, v{AC2} offset:{L_HEAD}")
o("  s_mov_b32 s73, 0")
o("K2_FL_C:")
o("  s_add_u32 s68, s68, 1")
o("  s_add_u32 s69, s68, 1")
o("  v_readlane_b32 s70, v33, s69")
o("  s_waitcnt lgkmcnt(0)")
for j in range(4):
    o(f"  v_mov_b32 v{AC2+j}, 0")
o("  s_setpc_b64 s[76:77]")

o('.section .rodata,"a"')
for name, vg in (("mpnn_k1_kernel", 112), ("mpnn_k2_kernel", 128)):
    o(".p2align 6")
    o(f".amdhsa_kernel {name}")
    o(f"  .amdhsa_next_free_vgpr {vg}")
    o("  .amdhsa_next_free_sgpr 102")
    o(f"  .amdhsa_accum_offset {vg}")
    o("  .amdhsa_group_segment_fixed_size 0")
    o("  .amdhsa_kernarg_size 80")
    o("  .amdhsa_user_sgpr_count 2")
    o("  .amdhsa_user_sgpr_kernarg_segment_ptr 1")
    o("  .amdhsa_system_sgpr_workgroup_id_x 1")
    o(".end_amdhsa_kernel")

open(sys.argv[1] if len(sys.argv) > 1 else "standalone__edge_featured_mpnn_egc__graph.s", "w").write("\n".join(out) + "\n")
```

```python
import sys

N = 12500
E = 800000
NB = 256
BN = 49
PW = 250
CH = 3200
GW = 98
ROWS = 12544
KSEG = 48
T_OFF = 0
A_OFF = 4 << 20
U_OFF = 8 << 20
REC_OFF = 12 << 20
OFFT_OFF = 20 << 20
NLOG2E = 0xbfb8aa3b

import os
DBG = int(os.environ.get("DBG","0"))
EXP = os.environ.get("EXP","")
PRIO = int(os.environ.get("PRIO","1"))
P1, P2, P3 = [int(x) for x in os.environ.get("PTH","1,3,6").split(",")]
out = []
def stamp(i):
    if DBG:
        o(f"  s_memtime s[{80+2*i}:{81+2*i}]")
def o(s=""):
    out.append(s)

def srd(d, lo, hi, size):
    o(f"  s_mov_b32 s{d}, s{lo}")
    o(f"  s_and_b32 s{d+1}, s{hi}, 0xffff")
    o(f"  s_mov_b32 s{d+2}, {size}")
    o(f"  s_mov_b32 s{d+3}, 0x00020000")

def srd_off(d, lo, hi, off, size):
    o(f"  s_add_u32 s{d}, s{lo}, {off}")
    o(f"  s_addc_u32 s{d+1}, s{hi}, 0")
    o(f"  s_and_b32 s{d+1}, s{d+1}, 0xffff")
    o(f"  s_mov_b32 s{d+2}, {size}")
    o(f"  s_mov_b32 s{d+3}, 0x00020000")

def wave_scan(v, tmp=None):
    for sh in (1, 2, 4, 8):
        o("  s_nop 1")
        o(f"  v_add_u32_dpp v{v}, v{v}, v{v} row_shr:{sh} row_mask:0xf bank_mask:0xf")
    o("  s_nop 1")
    o(f"  v_add_u32_dpp v{v}, v{v}, v{v} row_bcast:15 row_mask:0xa bank_mask:0xf")
    o("  s_nop 1")
    o(f"  v_add_u32_dpp v{v}, v{v}, v{v} row_bcast:31 row_mask:0xc bank_mask:0xf")
    o("  s_nop 1")

K2_LDS = 150 * 1024
K1_LDS = 36 * 1024
o(f"; @launch kernel=mpnn_k1_kernel grid=({PW+GW},1,1) block=(512,1,1) lds={K1_LDS}")
o(f"; @launch kernel=mpnn_k2_kernel grid=({NB},1,1) block=(1024,1,1) lds={K2_LDS}")
o('.amdgcn_target "amdgcn-amd-amdhsa--gfx950"')
o(".text")

o(".globl mpnn_k1_kernel")
o(".p2align 8")
o(".type mpnn_k1_kernel,@function")
o("mpnn_k1_kernel:")
o(f"  s_cmp_ge_u32 s2, {PW+GW}")
o("  s_cbranch_scc1 K1_END")
stamp(0)
o("  s_load_dwordx8 s[8:15], s[0:1], 0")
o("  s_load_dwordx8 s[16:23], s[0:1], 32")
o("  s_load_dwordx2 s[24:25], s[0:1], 72")
o(f"  s_cmp_ge_u32 s2, {PW}")
o("  s_cbranch_scc1 K1_GEMM")

HIST = 0
OFFL = 1024
STG = 2048
o("  v_lshlrev_b32 v1, 4, v0")
o("  v_lshlrev_b32 v2, 3, v0")
o("  v_lshlrev_b32 v3, 2, v0")
o("  v_mov_b32 v4, 0")
o(f"  ds_write_b32 v3, v4 offset:{HIST}")
o(f"  s_mul_i32 s50, s2, {CH*4}")
o(f"  s_mul_i32 s54, s2, {CH*2}")
o(f"  s_add_u32 s51, s50, 6400")
o(f"  s_add_u32 s55, s54, 3200")
o("  s_mov_b32 s58, 21400")
o("  s_mov_b32 s59, -49")
o("  v_cmp_gt_u32 vcc, 400, v0")
o("  s_waitcnt lgkmcnt(0)")
srd(28, 14, 15, E*4)
srd(32, 12, 13, E*4)
srd(36, 10, 11, E*2)
o("  s_and_saveexec_b64 s[62:63], vcc")
o("  s_cbranch_execz K1_P_L0")
vD, vS, vE = 8, 16, 24
for r in range(2):
    o(f"  buffer_load_dwordx4 v[{vD+4*r}:{vD+4*r+3}], v1, s[28:31], s{50+r} offen")
for r in range(2):
    o(f"  buffer_load_dwordx4 v[{vS+4*r}:{vS+4*r+3}], v1, s[32:35], s{50+r} offen")
for r in range(2):
    o(f"  buffer_load_dwordx2 v[{vE+2*r}:{vE+2*r+1}], v2, s[36:39], s{54+r} offen")
o("K1_P_L0:")
o(f"  s_mul_i32 s60, s2, {CH*8}")
o(f"  s_add_u32 s60, s60, {REC_OFF}")
o("  s_add_u32 s40, s24, s60")
o("  s_addc_u32 s41, s25, 0")
o("  s_and_b32 s41, s41, 0xffff")
o(f"  s_mov_b32 s42, {CH*8}")
o("  s_mov_b32 s43, 0x00020000")
srd_off(44, 24, 25, OFFT_OFF, 257*1024)
o("  v_mov_b32 v5, 1")
o("  s_mov_b32 s61, 0xffff0000")
o("  s_barrier")
vA, vR, vL = 28, 36, 44
o("  s_waitcnt vmcnt(4)")
stamp(1)
for k in range(8):
    o(f"  v_mul_u32_u24 v6, s58, v{vD+k}")
    o(f"  v_lshrrev_b32 v6, 20, v6")
    o(f"  v_mad_i32_i24 v{vL+2*k+1}, v6, s59, v{vD+k}")
    o(f"  v_and_b32 v7, 7, v6")
    o(f"  v_lshrrev_b32 v6, 3, v6")
    o(f"  v_lshl_or_b32 v6, v7, 5, v6")
    o(f"  v_lshlrev_b32 v{vA+k}, 2, v6")
    o(f"  ds_add_rtn_u32 v{vR+k}, v{vA+k}, v5 offset:{HIST}")
o("  s_waitcnt lgkmcnt(0)")
o("  s_barrier")
stamp(2)
o("  s_waitcnt vmcnt(0)")
for k in range(8):
    r, j = k >> 2, k & 3
    ereg = vE + 2*r + (j >> 1)
    if j & 1 == 0:
        o(f"  v_lshl_or_b32 v{vL+2*k}, v{ereg}, 16, v{vS+k}")
    else:
        o(f"  v_and_or_b32 v{vL+2*k}, v{ereg}, s61, v{vS+k}")
o("  s_mov_b64 exec, s[62:63]")
o("  v_cmp_gt_u32 vcc, 64, v0")
o("  s_and_saveexec_b64 s[64:65], vcc")
o("  s_cbranch_execz K1_P_SCANDONE")
o(f"  ds_read_b128 v[60:63], v1 offset:{HIST}")
o("  s_waitcnt lgkmcnt(0)")
o("  v_add_u32 v65, v60, v61")
o("  v_add_u32 v66, v65, v62")
o("  v_add_u32 v67, v66, v63")
o("  v_mov_b32 v68, v67")
wave_scan(68)
o("  v_sub_u32 v68, v68, v67")
o("  v_add_u32 v69, v68, v60")
o("  v_add_u32 v70, v68, v65")
o("  v_add_u32 v71, v68, v66")
o(f"  ds_write_b128 v1, v[68:71] offset:{OFFL}")
o("  v_lshlrev_b32 v64, 12, v0")
o("  s_lshl_b32 s66, s2, 2")
for j in range(4):
    o(f"  buffer_store_dword v{68+j}, v64, s[44:47], s66 offen offset:{j*1024}")
o(f"  v_mov_b32 v72, {CH}")
o(f"  v_mov_b32 v73, {256*1024}")
o("  buffer_store_dword v72, v73, s[44:47], s66 offen")
o("K1_P_SCANDONE:")
o("  s_mov_b64 exec, s[64:65]")
o("  v_cmp_gt_u32 vcc, 400, v0")
o("  s_and_saveexec_b64 s[62:63], vcc")
o("  s_waitcnt lgkmcnt(0)")
o("  s_barrier")
stamp(3)
for k in range(8):
    o(f"  ds_read_b32 v{vD+k}, v{vA+k} offset:{OFFL}")
o("  s_waitcnt lgkmcnt(0)")
for k in range(8):
    o(f"  v_add_u32 v6, v{vD+k}, v{vR+k}")
    o(f"  v_lshlrev_b32 v6, 3, v6")
    o(f"  ds_write_b64 v6, v[{vL+2*k}:{vL+2*k+1}] offset:{STG}")
o("  s_mov_b64 exec, s[62:63]")
o("  s_waitcnt lgkmcnt(0)")
o("  s_barrier")
stamp(4)
for i in range(4):
    o(f"  ds_read_b128 v[{8+4*i}:{8+4*i+3}], v1 offset:{STG+8192*i}")
o("  v_add_u32 v2, 0x2000, v1")
o("  v_add_u32 v3, 0x4000, v1")
o("  v_add_u32 v4, 0x6000, v1")
for i in range(4):
    o(f"  s_waitcnt lgkmcnt({3-i})")
    o(f"  buffer_store_dwordx4 v[{8+4*i}:{8+4*i+3}], v{1+i}, s[40:43], 0 offen")
if DBG:
    o("  s_waitcnt vmcnt(0)")
    stamp(5)
    o("  s_waitcnt lgkmcnt(0)")
    o("  s_cmp_lg_u32 s2, {}".format(7))
    o("  s_cbranch_scc1 K1_END")
    o("  v_cmp_eq_u32 vcc, 0, v0")
    o("  s_and_saveexec_b64 s[70:71], vcc")
    o("  s_cbranch_execz K1_END")
    o("  s_load_dwordx2 s[72:73], s[0:1], 64")
    o("  s_waitcnt lgkmcnt(0)")
    srd(76, 72, 73, 256)
    o("  v_mov_b32 v1, 0")
    for i in range(1, 5+1):
        o(f"  s_sub_u32 s73, s{80+2*i}, s80")
        o(f"  v_mov_b32 v2, s73")
        o(f"  buffer_store_dword v2, v1, s[76:79], 0 offen offset:{4*i}")
o("  s_endpgm")

o("K1_GEMM:")
o(f"  s_sub_u32 s3, s2, {PW}")
o("  v_lshrrev_b32 v1, 6, v0")
o("  s_nop 0")
o("  v_readfirstlane_b32 s5, v1")
o("  v_and_b32 v2, 63, v0")
o("  v_and_b32 v3, 31, v2")
o("  v_lshrrev_b32 v4, 5, v2")
o("  v_lshlrev_b32 v10, 4, v0")
o("  s_and_b32 s6, s5, 1")
o("  s_lshr_b32 s26, s5, 1")
o("  s_lshl_b32 s4, s3, 2")
o("  s_add_u32 s4, s4, s26")
o("  s_lshl_b32 s4, s4, 5")
o("  s_waitcnt lgkmcnt(0)")
srd(28, 20, 21, 128*128)
srd(32, 18, 19, 8192)
srd(36, 8, 9, N*128)
XF = 16
WT = 32
WF = 48
AC = 80
o("  s_mov_b32 s26, 8192")
o(f"  buffer_load_dwordx4 v[{WT}:{WT+3}], v10, s[28:31], s26 offen")
o(f"  buffer_load_dwordx4 v[{WT+4}:{WT+7}], v10, s[32:35], 0 offen")
o("  v_add_u32 v7, s4, v3")
o("  v_lshlrev_b32 v7, 7, v7")
o("  v_lshl_add_u32 v7, v4, 4, v7")
for ks in range(4):
    o(f"  buffer_load_dwordx4 v[{XF+ks*4}:{XF+ks*4+3}], v7, s[36:39], 0 offen offset:{ks*32}")
srd_off(40, 24, 25, T_OFF, ROWS*256)
o("  v_lshlrev_b32 v5, 10, v4")
o("  v_bfe_u32 v6, v2, 2, 2")
o("  v_lshl_add_u32 v5, v6, 7, v5")
o("  v_bfe_u32 v6, v2, 4, 1")
o("  v_lshl_add_u32 v5, v6, 5, v5")
o("  v_and_b32 v6, 3, v2")
o("  v_lshl_add_u32 v5, v6, 3, v5")
o("  s_lshl_b32 s26, s6, 6")
o("  v_add_u32 v5, s26, v5")
for i in range(32):
    o(f"  v_mov_b32 v{AC+i}, 0")
o("  v_lshl_add_u32 v9, v4, 2, s4")
o("  v_lshlrev_b32 v9, 8, v9")
o("  v_lshl_add_u32 v9, v3, 2, v9")
o("  s_lshl_b32 s26, s6, 7")
o("  v_add_u32 v9, s26, v9")
for q in range(4):
    o(f"  s_mov_b32 s{64+q}, {(8*q)*256}")
o("  v_mov_b32 v12, 0x71800000")
o("  v_mov_b32 v11, 0xf1800000")
o("  s_waitcnt vmcnt(4)")
for idx, off in enumerate((0, 8192)):
    o(f"  ds_write_b128 v10, v[{WT+4*idx}:{WT+4*idx+3}] offset:{off}")
o("  s_waitcnt lgkmcnt(0)")
o("  s_barrier")
for m in range(2):
    for ks in range(4):
        for h in range(2):
            f = WF+m*16+ks*4+2*h
            o(f"  ds_read_b64_tr_b16 v[{f}:{f+1}], v5 offset:{m*8192 + ks*2048 + h*512}")
o("  s_waitcnt vmcnt(0) lgkmcnt(0)")
stamp(1)
for m in range(2):
    for ks in range(4):
        a = XF+ks*4
        b = WF+m*16+ks*4
        c = AC+m*16
        o(f"  v_mfma_f32_32x32x16_bf16 v[{c}:{c+15}], v[{a}:{a+3}], v[{b}:{b+3}], v[{c}:{c+15}]")
o("  s_nop 15")
o("  s_nop 3")
stamp(2)
for i in range(16):
    a1 = AC+i
    a2 = AC+16+i
    o(f"  v_mul_f32 v13, {NLOG2E:#x}, v{a1}")
    o(f"  v_med3_f32 v13, v13, v11, v12")
    o(f"  v_cvt_pk_bf16_f32 v13, v13, v13")
    o(f"  v_and_b32 v13, 0xffff, v13")
    o(f"  v_and_b32 v14, 0x7fffffff, v{a2}")
    o(f"  v_and_b32 v15, 0x80000000, v{a2}")
    o(f"  v_sub_u32 v14, v14, v13")
    o(f"  v_add_u32 v14, 0x8000, v14")
    o(f"  v_max_i32 v14, 0, v14")
    o(f"  v_min_i32 v14, 0x7f7fffff, v14")
    o(f"  v_and_b32 v14, 0xffff0000, v14")
    o(f"  v_or3_b32 v{a1}, v14, v15, v13")
    o(f"  buffer_store_dword v{a1}, v9, s[40:43], s{64+(i>>2)} offen offset:{(i&3)*256}")
if DBG:
    o("  s_waitcnt vmcnt(0)")
    stamp(3)
    o("  s_waitcnt lgkmcnt(0)")
    o("  s_cmp_lg_u32 s2, {}".format(PW+7))
    o("  s_cbranch_scc1 K1_END")
    o("  v_cmp_eq_u32 vcc, 0, v0")
    o("  s_and_saveexec_b64 s[70:71], vcc")
    o("  s_cbranch_execz K1_END")
    o("  s_load_dwordx2 s[72:73], s[0:1], 64")
    o("  s_waitcnt lgkmcnt(0)")
    srd(76, 72, 73, 256)
    o("  v_mov_b32 v1, 64")
    for i in range(1, 3+1):
        o(f"  s_sub_u32 s73, s{80+2*i}, s80")
        o(f"  v_mov_b32 v2, s73")
        o(f"  buffer_store_dword v2, v1, s[76:79], 0 offen offset:{4*i}")
o("K1_END:")
o("  s_endpgm")

L_HIST = 0
L_GOFF = 256
L_MISC = 512
L_HN = 576
L_HEAD = 1024
L_ACC = L_HEAD + 16*256
L_A = L_ACC + BN*256
L_U = L_A + 64*256
L_SORT = L_U + 64*256
L_W = L_HEAD
NIT = KSEG // 4
o(".globl mpnn_k2_kernel")
o(".p2align 8")
o(".type mpnn_k2_kernel,@function")
o("mpnn_k2_kernel:")
o(f"  s_cmp_ge_u32 s2, {NB}")
o("  s_cbranch_scc1 K2_END")
stamp(0)
o("  s_load_dwordx4 s[8:11], s[0:1], 48")
o("  s_load_dwordx2 s[12:13], s[0:1], 64")
o("  s_load_dwordx2 s[14:15], s[0:1], 32")
o("  s_load_dwordx2 s[16:17], s[0:1], 0")
o("  s_load_dwordx2 s[24:25], s[0:1], 72")
o("  v_lshrrev_b32 v1, 6, v0")
o("  v_and_b32 v2, 63, v0")
o("  v_readfirstlane_b32 s5, v1")
o("  v_lshlrev_b32 v3, 4, v0")
o("  v_lshrrev_b32 v4, 3, v0")
o("  v_and_b32 v5, 7, v0")
o("  v_lshlrev_b32 v5, 1, v5")
o("  v_and_b32 v6, 15, v2")
o("  v_lshlrev_b32 v6, 4, v6")
o("  v_lshlrev_b32 v7, 2, v4")
o("  s_and_b32 s7, s2, 7")
o("  s_lshl_b32 s7, s7, 5")
o("  s_lshr_b32 s58, s2, 3")
o("  s_or_b32 s7, s7, s58")
o("  s_lshl_b32 s7, s7, 10")
o(f"  s_mul_i32 s6, s2, {BN*256}")
o("  s_waitcnt lgkmcnt(0)")
srd(48, 8, 9, 129*128)
srd(44, 14, 15, 8192)
srd(40, 16, 17, N*128)
srd_off(28, 24, 25, OFFT_OFF, 257*1024)
o("  buffer_load_dword v8, v7, s[28:31], s7 offen")
o("  buffer_load_dword v9, v7, s[28:31], s7 offen offset:1024")
o("  buffer_load_dword v24, v7, s[28:31], s7 offen offset:512")
o("  buffer_load_dword v25, v7, s[28:31], s7 offen offset:1536")
srd_off(32, 24, 25, REC_OFF, PW*CH*8)
srd_off(36, 24, 25, T_OFF, ROWS)
o("  s_or_b32 s37, s37, 0x01000000")
srd(52, 10, 11, N*128)
o("  v_mov_b32 v120, 0")
o("  v_mov_b32 v121, 0")
o("  v_mov_b32 v122, 0")
o("  v_mov_b32 v123, 0")
o("  s_cmp_lg_u32 s5, 0")
o("  s_cbranch_scc1 K2_Z2")
o(f"  ds_write_b128 v3, v[120:123] offset:0")
o("K2_Z2:")
o("  v_lshrrev_b32 v10, 4, v2")
o("  v_and_b32 v11, 1, v10")
o("  v_lshlrev_b32 v11, 3, v11")
o("  v_lshrrev_b32 v10, 1, v10")
o("  v_lshl_add_u32 v11, v10, 2, v11")
o("  v_add_u32 v36, v11, v6")
o("  v_mov_b32 v27, 1")
o("  v_mov_b32 v32, 0x3f80")
o("  s_mov_b32 s60, 0")
o("  v_lshrrev_b32 v10, 1, v6")
o(f"  v_add_u32 v10, {128*128}, v10")
o("  buffer_load_dwordx2 v[20:21], v10, s[48:51], 0 offen")
o("  v_and_b32 v10, 0x1ff0, v3")
o("  s_cmp_ge_u32 s5, 8")
o("  s_cbranch_scc1 K2_W1")
o("  buffer_load_dwordx4 v[12:15], v10, s[48:51], 0 offen")
o("  s_lshr_b32 s58, s5, 2")
o("  s_lshl_b32 s58, s58, 5")
o(f"  s_mul_i32 s59, s2, {BN}")
o("  s_add_u32 s58, s58, s59")
o("  v_and_b32 v11, 31, v2")
o("  v_add_u32 v11, s58, v11")
o("  v_lshlrev_b32 v11, 7, v11")
o("  v_lshrrev_b32 v1, 5, v2")
o("  v_lshl_add_u32 v11, v1, 4, v11")
for ks in range(4):
    o(f"  buffer_load_dwordx4 v[{88+ks*4}:{88+ks*4+3}], v11, s[40:43], 0 offen offset:{ks*32}")
o("  s_waitcnt vmcnt(6)")
o("  s_branch K2_W2")
o("K2_W1:")
o("  buffer_load_dwordx4 v[12:15], v10, s[44:47], 0 offen")
o("  s_waitcnt vmcnt(2)")
o("K2_W2:")
o(f"  v_mov_b32 v11, {CH*8}")
o("  v_add_u32 v10, 128, v4")
stamp(1)
o("  v_sub_u32 v9, v9, v8")
o("  v_sub_u32 v25, v25, v24")
o(f"  v_cmp_gt_u32 vcc, {PW}, v10")
o("  v_add_u32 v8, v8, v5")
o("  v_add_u32 v24, v24, v5")
o("  v_cndmask_b32 v25, 0, v25, vcc")
o(f"  v_min_u32 v9, {CH}, v9")
o(f"  v_min_u32 v25, {CH}, v25")
o("  v_lshlrev_b32 v8, 3, v8")
o("  v_lshlrev_b32 v24, 3, v24")
o("  v_mad_u32_u24 v8, v4, v11, v8")
o("  v_mad_u32_u24 v24, v10, v11, v24")
o("  v_max_u32 v23, v9, v25")
o("  v_sub_u32 v26, v9, v5")
o("  v_sub_u32 v25, v25, v5")
RL = 40
RK = 64
REM = (26, 25)
ADR = (8, 24)
NI = KSEG // 16
o("K2_ROUND:")
for p in range(2):
    for it in range(NI):
        q = p*NI + it
        o(f"  v_cmpx_lt_i32 vcc, {16*it}, v{REM[p]}")
        o(f"  s_cbranch_execz K2_LD_DONE{p}")
        o(f"  buffer_load_dwordx4 v[{RL+4*q}:{RL+4*q+3}], v{ADR[p]}, s[32:35], 0 offen offset:{128*it}")
    o(f"K2_LD_DONE{p}:")
    o("  s_mov_b64 exec, -1")
o("  s_cmp_lg_u32 s60, 0")
o("  s_cbranch_scc1 K2_SETUP_SKIP")
o("  s_waitcnt lgkmcnt(0)")
o("  s_barrier")
o("  s_waitcnt vmcnt(0)")
o(f"  v_mov_b32 v11, {L_MISC}")
o("  ds_max_u32 v11, v23")
o("  s_branch K2_SETUP_DONE")
o("K2_SETUP_SKIP:")
o("  s_waitcnt lgkmcnt(0)")
o("  s_barrier")
o("  s_waitcnt vmcnt(0)")
o("K2_SETUP_DONE:")
stamp(2)
def rec_loop(tag, body):
    for p in range(2):
        for it in range(NI):
            for h in range(2):
                q = p*NI + it
                o(f"  v_cmpx_lt_i32 vcc, {16*it+h}, v{REM[p]}")
                o(f"  s_cbranch_execz K2_{tag}_DONE{p}")
                body(RL+4*q+2*h, 2*q+h)
        o(f"K2_{tag}_DONE{p}:")
        o("  s_mov_b64 exec, -1")
def b_at(r, i):
    o(f"  v_lshlrev_b32 v{r+1}, 2, v{r+1}")
    o(f"  ds_add_rtn_u32 v{RK+i}, v{r+1}, v27 offset:{L_HIST}")
rec_loop("AT", b_at)
o("  s_cmp_lg_u32 s60, 0")
o("  s_cbranch_scc1 K2_WST_SKIP")
o("  s_waitcnt vmcnt(0)")
o(f"  ds_write_b128 v3, v[12:15] offset:{L_W}")
o("  v_lshlrev_b32 v28, 16, v20")
o("  v_and_b32 v29, 0xffff0000, v20")
o("  v_lshlrev_b32 v30, 16, v21")
o("  v_and_b32 v31, 0xffff0000, v21")
for j in range(4):
    o(f"  v_mul_f32 v{28+j}, {NLOG2E:#x}, v{28+j}")
o("K2_WST_SKIP:")
o("  s_waitcnt lgkmcnt(0)")
o("  s_barrier")
o("  s_cmp_lg_u32 s60, 0")
o("  s_cbranch_scc1 K2_PF_SKIP")
o("  s_lshr_b32 s58, s2, 3")
o(f"  s_mul_i32 s58, s58, {392*256}")
for i in range(7 if EXP == "prefetch" else 0):
    o(f"  buffer_load_dwordx4 v[104:107], v3, s[36:39], s58 offen")
    o(f"  s_add_u32 s58, s58, 16384")

o("K2_PF_SKIP:")
o("  v_lshlrev_b32 v11, 2, v2")
o(f"  ds_read_b32 v37, v11 offset:{L_HIST}")
o(f"  v_cmp_gt_u32 s[56:57], {BN}, v2")
o("  s_waitcnt lgkmcnt(0)")
o("  v_add_u32 v34, 3, v37")
o("  v_and_b32 v34, -4, v34")
o("  v_max_u32 v34, 4, v34")
o("  v_cndmask_b32 v34, 0, v34, s[56:57]")
o("  v_mov_b32 v35, v34")
wave_scan(35)
o("  v_readlane_b32 s61, v35, 63")
o("  v_sub_u32 v35, v35, v34")
o("  s_add_u32 s62, s61, 15")
o("  s_and_b32 s62, s62, -16")
o("  v_mov_b32 v33, s62")
o("  s_nop 1")
o("  v_cndmask_b32 v33, v33, v35, s[56:57]")
o("  s_cmp_lg_u32 s5, 0")
o("  s_cbranch_scc1 K2_PAD_DONE")
o(f"  v_mov_b32 v38, {N}")
o("  v_mov_b32 v39, 0")
o("  v_add_u32 v10, v35, v37")
o("  v_lshlrev_b32 v10, 3, v10")
o("  v_sub_u32 v34, v34, v37")
for j in range(4):
    o(f"  v_cmpx_lt_u32 vcc, {j}, v34")
    o(f"  ds_write_b64 v10, v[38:39] offset:{L_SORT+8*j}")
o("  s_mov_b64 exec, -1")
o("  v_add_u32 v10, s61, v2")
o("  v_lshlrev_b32 v10, 3, v10")
o("  v_cmpx_gt_u32 vcc, 16, v2")
o(f"  ds_write_b64 v10, v[38:39] offset:{L_SORT}")
o("  s_mov_b64 exec, -1")
o("K2_PAD_DONE:")
for p in range(2):
    for it in range(NI):
        for h in range(2):
            q = p*NI + it
            r = RL+4*q+2*h
            o(f"  v_cmp_lt_i32 vcc, {16*it+h}, v{REM[p]}")
            o(f"  s_cbranch_vccz K2_SC1_DONE{p}")
            o(f"  ds_bpermute_b32 v{76+2*q+h}, v{r+1}, v33")
    o(f"K2_SC1_DONE{p}:")
o("  s_waitcnt lgkmcnt(0)")
def b_wr(r, i):
    o(f"  v_add_u32 v11, v{76+i}, v{RK+i}")
    o(f"  v_lshlrev_b32 v11, 3, v11")
    o(f"  v_and_b32 v{r+1}, 0xffff0000, v{r}")
    o(f"  v_and_b32 v{r}, 0x3fff, v{r}")
    o(f"  ds_write_b64 v11, v[{r}:{r+1}] offset:{L_SORT}")
rec_loop("SC2", b_wr)
ACM = 40
o("  s_cmp_lg_u32 s60, 0")
o("  s_cbranch_scc1 K2_MM_DONE")
o("  s_cmp_ge_u32 s5, 8")
o("  s_cbranch_scc1 K2_MM_DONE")
o("  v_lshrrev_b32 v1, 5, v2")
o("  v_lshlrev_b32 v10, 10, v1")
o("  v_bfe_u32 v11, v2, 2, 2")
o("  v_lshl_add_u32 v10, v11, 7, v10")
o("  v_bfe_u32 v11, v2, 4, 1")
o("  v_lshl_add_u32 v10, v11, 5, v10")
o("  v_and_b32 v11, 3, v2")
o("  v_lshl_add_u32 v10, v11, 3, v10")
o("  s_and_b32 s58, s5, 1")
o("  s_bfe_u32 s59, s5, 0x10001")
o("  s_lshl_b32 s72, s58, 6")
o("  s_lshl_b32 s73, s59, 13")
o("  s_add_u32 s72, s72, s73")
o("  v_add_u32 v10, s72, v10")
for ks in range(4):
    for h in range(2):
        f = 104+ks*4+2*h
        o(f"  ds_read_b64_tr_b16 v[{f}:{f+1}], v10 offset:{L_W + ks*2048 + h*512}")
for i in range(16):
    o(f"  v_mov_b32 v{ACM+i}, 0")
o("  s_lshr_b32 s72, s5, 2")
o("  s_lshl_b32 s72, s72, 13")
o("  s_lshl_b32 s73, s58, 7")
o("  s_add_u32 s72, s72, s73")
o("  s_lshl_b32 s73, s59, 14")
o("  s_add_u32 s72, s72, s73")
o("  v_lshlrev_b32 v10, 10, v1")
o("  v_and_b32 v11, 31, v2")
o("  v_lshl_add_u32 v10, v11, 2, v10")
o("  v_add_u32 v10, s72, v10")
o(f"  s_cmp_eq_u32 s59, 0")
o(f"  s_cselect_b32 s73, {NLOG2E:#x}, 1.0")
o("  v_mov_b32 v11, s73")
o("  s_waitcnt lgkmcnt(0)")
for ks in range(4):
    o(f"  v_mfma_f32_32x32x16_bf16 v[{ACM}:{ACM+15}], v[{88+ks*4}:{88+ks*4+3}], v[{104+ks*4}:{104+ks*4+3}], v[{ACM}:{ACM+15}]")
o("  s_nop 15")
o("  s_nop 3")
for i in range(16):
    o(f"  v_mul_f32 v{ACM+i}, v{ACM+i}, v11")
    o(f"  ds_write_b32 v10, v{ACM+i} offset:{L_A + ((i&3) + 8*(i>>2))*256}")
o("K2_MM_DONE:")
o("  v_readlane_b32 s62, v33, 49")
o("  s_lshr_b32 s63, s62, 4")
o("  s_mul_i32 s64, s63, s5")
o("  s_lshr_b32 s64, s64, 4")
o("  s_add_u32 s65, s5, 1")
o("  s_mul_i32 s65, s63, s65")
o("  s_lshr_b32 s65, s65, 4")
o("  s_lshl_b32 s66, s64, 4")
o("  s_lshl_b32 s67, s65, 4")
o(f"  v_cmp_gt_u32 s[56:57], {BN}, v2")
o("  v_cmp_ge_u32 vcc, s66, v33")
o("  s_and_b64 vcc, vcc, s[56:57]")
o("  s_bcnt1_i32_b64 s68, vcc")
o("  s_sub_u32 s68, s68, 1")
o("  s_add_u32 s69, s68, 1")
o("  v_readlane_b32 s70, v33, s69")
o("  v_readlane_b32 s72, v33, s68")
o("  s_cmp_lg_u32 s72, s66")
o("  s_cselect_b32 s73, 1, 0")
o("  s_cmp_ge_u32 s64, s65")
o("  s_cselect_b32 s73, 0, s73")
o("  s_cmp_lg_u32 s73, 0")
o("  s_cselect_b32 s74, s68, -1")
o("  v_mov_b32 v11, s74")
o("  s_lshl_b32 s74, s5, 2")
o("  v_mov_b32 v10, s74")
o(f"  ds_write_b32 v10, v11 offset:{L_HN}")
o("  s_waitcnt lgkmcnt(0)")
o("  s_barrier")
stamp(3)
if DBG:
    o("  s_memrealtime s[94:95]")
o("  s_cmp_ge_u32 s64, s65")
o("  s_cbranch_scc1 K2_MAIN_DONE")
AV = 40
AC2 = 44
RB = 48
EBL = [12,13,14,15, 20,21,22,23, 4,5,9,10]
WB = 72
TT = 120
NBUF = 3
VRA = 34
VAA = 35
VRB = 37
o("  s_lshl_b32 s71, s68, 8")
o(f"  v_add_u32 v{VAA}, s71, v6")
o(f"  ds_read_b128 v[{AV}:{AV+3}], v{VAA} offset:{L_A}")
o("  v_lshrrev_b32 v11, 4, v2")
o("  v_lshlrev_b32 v11, 3, v11")
o("  s_lshl_b32 s71, s66, 3")
o(f"  v_add_u32 v{VRA}, s71, v11")
for j in range(4):
    o(f"  v_mov_b32 v{AC2+j}, 0")
o("  v_mov_b32 v38, 1.0")
o("  v_mov_b32 v39, 1.0")
for b in range(NBUF):
    for g in range(4):
        o(f"  v_mov_b32 v{RB+b*8+g*2+1}, v6")
def rec_read(bf):
    for g in range(4):
        o(f"  ds_read_b32 v{RB+bf*8+g*2}, v{VRA} offset:{L_SORT+32*g}")
        o(f"  ds_read_b32 v{EBL[bf*4+g]}, v{VRA} offset:{L_SORT+32*g+4}")
    o(f"  v_add_u32 v{VRA}, 128, v{VRA}")
def issue(bf):
    for g in range(4):
        r = RB+bf*8+g*2
        if EXP == "samerow":
            o(f"  v_mov_b32 v{r}, 0")
        if EXP != "noload":
            o(f"  buffer_load_dwordx4 v[{WB+bf*16+g*4}:{WB+bf*16+g*4+3}], v[{r}:{r+1}], s[36:39], 0 idxen offen")
        o(f"  ds_read_b32 v{r}, v{VRB} offset:{L_SORT+32*g}")
    o(f"  v_add_u32 v{VRB}, 128, v{VRB}")
uid = [0]
def compute(bf):
    for g in range(4):
        e = EBL[bf*4+g]
        ep, es = e & ~1, e & 1
        w = WB+bf*16+g*4
        t = TT + (g & 1)*4
        o(f"  s_waitcnt vmcnt({4*(NBUF-1) + 3 - g})")
        for j in (0, 2):
            o(f"  v_pk_fma_f32 v[{t+j}:{t+j+1}], v[{ep}:{ep+1}], v[{28+j}:{29+j}], v[{AV+j}:{AV+j+1}] op_sel:[{es},0,0] op_sel_hi:[{es},1,1]")
        o(f"  ds_read_b32 v{e}, v{VRA} offset:{L_SORT+32*g+4}")
        for j in range(4):
            o(f"  v_dot2_f32_bf16 v{t+j}, v{w+j}, v32, v{t+j}")
        if EXP != "nocompute":
            for j in range(4):
                o(f"  v_exp_f32 v{t+j}, v{t+j}")
            o("  s_nop 0")
            for j in (0, 2):
                o(f"  v_pk_add_f32 v[{t+j}:{t+j+1}], v[{t+j}:{t+j+1}], v[38:39]")
            for j in range(4):
                o(f"  v_rcp_f32 v{t+j}, v{t+j}")
        o("  s_add_u32 s66, s66, 4")
        for j in (0, 2):
            o(f"  v_pk_fma_f32 v[{AC2+j}:{AC2+j+1}], v[{t+j}:{t+j+1}], v[{w+j}:{w+j+1}], v[{AC2+j}:{AC2+j+1}]")
        uid[0] += 1
        u = uid[0]
        o("  s_cmp_lg_u32 s66, s70")
        o(f"  s_cbranch_scc1 K2_NF{u}")
        o("  s_getpc_b64 s[76:77]")
        o("  s_add_u32 s76, s76, 12")
        o("  s_addc_u32 s77, s77, 0")
        o("  s_branch K2_FLUSH")
        o(f"K2_NF{u}:")
    o(f"  v_add_u32 v{VRA}, 128, v{VRA}")
for b in range(NBUF):
    rec_read(b)
o(f"  v_mov_b32 v{VRB}, v{VRA}")
o("  s_waitcnt lgkmcnt(0)")
for b in range(NBUF-1):
    issue(b)
o("  s_setprio 3")
pid = [0]
def prio_update():
    if not PRIO:
        return
    pid[0] += 1
    u = pid[0]
    o("  s_sub_u32 s78, s67, s66")
    o(f"  s_cmp_gt_u32 s78, {16*P3}")
    o(f"  s_cbranch_scc1 K2_PD{u}")
    o(f"  s_cmp_gt_u32 s78, {16*P2}")
    o(f"  s_cbranch_scc1 K2_PA{u}")
    o(f"  s_cmp_gt_u32 s78, {16*P1}")
    o(f"  s_cbranch_scc1 K2_PB{u}")
    o("  s_setprio 0")
    o(f"  s_branch K2_PD{u}")
    o(f"K2_PA{u}:")
    o("  s_setprio 2")
    o(f"  s_branch K2_PD{u}")
    o(f"K2_PB{u}:")
    o("  s_setprio 1")
    o(f"K2_PD{u}:")
o("K2_LOOP:")
for b in range(NBUF):
    o("  s_waitcnt lgkmcnt(0)")
    issue((b + NBUF - 1) % NBUF)
    compute(b)
    prio_update()
    if b < NBUF-1:
        o("  s_cmp_ge_u32 s66, s67")
        o("  s_cbranch_scc1 K2_LOOP_EXIT")
o("  s_cmp_lt_u32 s66, s67")
o("  s_cbranch_scc1 K2_LOOP")
o("K2_LOOP_EXIT:")
o("  s_setprio 0")
o("  v_readlane_b32 s72, v33, s68")
o("  s_cmp_ge_u32 s72, s67")
o("  s_cbranch_scc1 K2_NOFINAL")
o("  s_getpc_b64 s[76:77]")
o("  s_add_u32 s76, s76, 12")
o("  s_addc_u32 s77, s77, 0")
o("  s_branch K2_FLUSH")
o("K2_NOFINAL:")
o("  s_waitcnt vmcnt(0) lgkmcnt(0)")
o("K2_MAIN_DONE:")
stamp(4)
o(f"  v_mov_b32 v11, {L_MISC}")
o("  ds_read_b32 v34, v11")
o("  s_barrier")
o("  v_lshlrev_b32 v10, 2, v2")
o(f"  ds_read_b32 v35, v10 offset:{L_HN}")
o(f"  ds_read_b128 v[12:15], v3 offset:{L_ACC}")
o(f"  ds_read_b128 v[16:19], v3 offset:{L_U}")
o("  v_lshrrev_b32 v10, 4, v0")
o("  s_waitcnt lgkmcnt(0)")
o("  v_readfirstlane_b32 s61, v34")
o(f"  s_min_u32 s61, s61, {CH}")
for w in range(16):
    o(f"  v_readlane_b32 s72, v35, {w}")
    o("  s_nop 1")
    o("  v_cmpx_eq_u32 vcc, s72, v10")
    o(f"  s_cbranch_execz K2_CB{w}")
    o(f"  ds_read_b128 v[20:23], v6 offset:{L_HEAD+256*w}")
    o("  s_waitcnt lgkmcnt(0)")
    for j in range(4):
        o(f"  v_add_f32 v{12+j}, v{12+j}, v{20+j}")
    o(f"K2_CB{w}:")
    o("  s_mov_b64 exec, -1")
o(f"  s_add_u32 s60, s60, {KSEG}")
o("  s_cmp_ge_u32 s60, s61")
o("  s_cbranch_scc1 K2_FINAL")
o("  v_cmp_gt_u32 vcc, 784, v0")
o("  s_and_saveexec_b64 s[56:57], vcc")
o("  s_cbranch_execz K2_NR0")
o(f"  ds_write_b128 v3, v[12:15] offset:{L_ACC}")
o("K2_NR0:")
o("  s_mov_b64 exec, s[56:57]")
o("  s_cmp_lg_u32 s5, 0")
o("  s_cbranch_scc1 K2_NR1")
o("  v_lshlrev_b32 v11, 2, v2")
o("  v_mov_b32 v34, 0")
o(f"  ds_write_b32 v11, v34 offset:{L_HIST}")
o("K2_NR1:")
o(f"  v_subrev_u32 v26, {KSEG}, v26")
o(f"  v_subrev_u32 v25, {KSEG}, v25")
o(f"  v_add_u32 v8, {KSEG*8}, v8")
o(f"  v_add_u32 v24, {KSEG*8}, v24")
o("  s_branch K2_ROUND")
o("K2_FINAL:")
stamp(5)
if DBG:
    o("  s_memrealtime s[96:97]")
o("  v_cmp_gt_u32 vcc, 784, v0")
o("  s_and_saveexec_b64 s[56:57], vcc")
o("  s_cbranch_execz K2_FIN2")
o("  v_lshlrev_b32 v11, 3, v0")
o(f"  s_mul_i32 s6, s2, {BN*128}")
for j in range(4):
    o(f"  v_add_f32 v{12+j}, v{12+j}, v{16+j}")
for j in range(4):
    o(f"  v_mul_f32 v{20+j}, {NLOG2E:#x}, v{12+j}")
for j in range(4):
    o(f"  v_exp_f32 v{20+j}, v{20+j}")
for j in range(4):
    o(f"  v_add_f32 v{20+j}, 1.0, v{20+j}")
for j in range(4):
    o(f"  v_rcp_f32 v{20+j}, v{20+j}")
o("  s_nop 0")
for j in range(4):
    o(f"  v_mul_f32 v{12+j}, v{12+j}, v{20+j}")
o("  v_cvt_pk_bf16_f32 v12, v12, v13")
o("  v_cvt_pk_bf16_f32 v13, v14, v15")
o("  buffer_store_dwordx2 v[12:13], v11, s[52:55], s6 offen")
o("K2_FIN2:")
o("  s_mov_b64 exec, -1")
if DBG:
    stamp(6)
    o("  s_waitcnt lgkmcnt(0)")
    o("  s_cmp_lg_u32 s2, 5")
    o("  s_cbranch_scc1 K2_END")
    o("  s_lshl_b32 s72, s5, 4")
    srd(76, 12, 13, 256)
    o("  v_mov_b32 v1, s72")
    for n, i in enumerate((2, 3, 4, 5)):
        o(f"  s_sub_u32 s73, s{80+2*i}, s80")
        o(f"  v_mov_b32 v2, s73")
        o(f"  buffer_store_dword v2, v1, s[76:79], 0 offen offset:{4*n}")
o("K2_END:")
o("  s_endpgm")
o("K2_FLUSH:")
o("  s_nop 1")
o(f"  v_permlane32_swap_b32 v{AC2}, v{AC2+1}")
o(f"  v_permlane32_swap_b32 v{AC2+2}, v{AC2+3}")
o("  s_lshl_b32 s71, s68, 8")
o(f"  v_add_u32 v{VAA}, s71, v6")
o(f"  v_add_f32 v{AC2}, v{AC2}, v{AC2+1}")
o(f"  v_add_f32 v{AC2+2}, v{AC2+2}, v{AC2+3}")
o(f"  ds_read_b128 v[{AV}:{AV+3}], v{VAA} offset:{L_A+256}")
o(f"  v_add_u32 v{VAA}, s71, v36")
o(f"  v_permlane16_swap_b32 v{AC2}, v{AC2+2}")
o("  s_cmp_lg_u32 s73, 0")
o("  s_cbranch_scc1 K2_FL_HEAD")
o(f"  v_add_f32 v{AC2}, v{AC2}, v{AC2+2}")
o("  s_cmp_eq_u32 s60, 0")
o("  s_cbranch_scc1 K2_FL_W")
o(f"  ds_read_b32 v{AC2+1}, v{VAA} offset:{L_ACC}")
o("  s_waitcnt lgkmcnt(0)")
o(f"  v_add_f32 v{AC2}, v{AC2}, v{AC2+1}")
o("K2_FL_W:")
o(f"  ds_write_b32 v{VAA}, v{AC2} offset:{L_ACC}")
o("  s_branch K2_FL_C")
o("K2_FL_HEAD:")
o(f"  v_add_f32 v{AC2}, v{AC2}, v{AC2+2}")
o("  s_lshl_b32 s71, s5, 8")
o(f"  v_add_u32 v{VAA}, s71, v36")
o(f"  ds_write_b32 v{VAA}, v{AC2} offset:{L_HEAD}")
o("  s_mov_b32 s73, 0")
o("K2_FL_C:")
o("  s_add_u32 s68, s68, 1")
o("  s_add_u32 s69, s68, 1")
o("  v_readlane_b32 s70, v33, s69")
o("  s_waitcnt lgkmcnt(0)")
for j in range(4):
    o(f"  v_mov_b32 v{AC2+j}, 0")
o("  s_setpc_b64 s[76:77]")

o('.section .rodata,"a"')
for name, vg in (("mpnn_k1_kernel", 112), ("mpnn_k2_kernel", 128)):
    o(".p2align 6")
    o(f".amdhsa_kernel {name}")
    o(f"  .amdhsa_next_free_vgpr {vg}")
    o("  .amdhsa_next_free_sgpr 102")
    o(f"  .amdhsa_accum_offset {vg}")
    o("  .amdhsa_group_segment_fixed_size 0")
    o("  .amdhsa_kernarg_size 80")
    o("  .amdhsa_user_sgpr_count 2")
    o("  .amdhsa_user_sgpr_kernarg_segment_ptr 1")
    o("  .amdhsa_system_sgpr_workgroup_id_x 1")
    o(".end_amdhsa_kernel")

open(sys.argv[1] if len(sys.argv) > 1 else "standalone__edge_featured_mpnn_egc__graph.s", "w").write("\n".join(out) + "\n")
```

```python
import sys

N = 12500
E = 800000
NB = 256
BN = 49
PW = 250
CH = 3200
GW = 98
ROWS = 12544
KSEG = 48
T_OFF = 0
A_OFF = 4 << 20
U_OFF = 8 << 20
REC_OFF = 12 << 20
OFFT_OFF = 20 << 20
NLOG2E = 0xbfb8aa3b

import os
DBG = int(os.environ.get("DBG","0"))
EXP = os.environ.get("EXP","")
PRIO = int(os.environ.get("PRIO","1"))
STAMPS = [int(x) for x in os.environ.get("STAMPS","2,3,4,5").split(",")]
P1, P2, P3 = [int(x) for x in os.environ.get("PTH","1,3,6").split(",")]
out = []
def stamp(i):
    if DBG:
        o(f"  s_memtime s[{80+2*i}:{81+2*i}]")
def o(s=""):
    out.append(s)

def srd(d, lo, hi, size):
    o(f"  s_mov_b32 s{d}, s{lo}")
    o(f"  s_and_b32 s{d+1}, s{hi}, 0xffff")
    o(f"  s_mov_b32 s{d+2}, {size}")
    o(f"  s_mov_b32 s{d+3}, 0x00020000")

def srd_off(d, lo, hi, off, size):
    o(f"  s_add_u32 s{d}, s{lo}, {off}")
    o(f"  s_addc_u32 s{d+1}, s{hi}, 0")
    o(f"  s_and_b32 s{d+1}, s{d+1}, 0xffff")
    o(f"  s_mov_b32 s{d+2}, {size}")
    o(f"  s_mov_b32 s{d+3}, 0x00020000")

def wave_scan(v, tmp=None):
    for sh in (1, 2, 4, 8):
        o("  s_nop 1")
        o(f"  v_add_u32_dpp v{v}, v{v}, v{v} row_shr:{sh} row_mask:0xf bank_mask:0xf")
    o("  s_nop 1")
    o(f"  v_add_u32_dpp v{v}, v{v}, v{v} row_bcast:15 row_mask:0xa bank_mask:0xf")
    o("  s_nop 1")
    o(f"  v_add_u32_dpp v{v}, v{v}, v{v} row_bcast:31 row_mask:0xc bank_mask:0xf")
    o("  s_nop 1")

K2_LDS = 160 * 1024
K1_LDS = 36 * 1024
o(f"; @launch kernel=mpnn_k1_kernel grid=({PW+GW},1,1) block=(512,1,1) lds={K1_LDS}")
o(f"; @launch kernel=mpnn_k2_kernel grid=({NB},1,1) block=(1024,1,1) lds={K2_LDS}")
o('.amdgcn_target "amdgcn-amd-amdhsa--gfx950"')
o(".text")

o(".globl mpnn_k1_kernel")
o(".p2align 8")
o(".type mpnn_k1_kernel,@function")
o("mpnn_k1_kernel:")
o(f"  s_cmp_ge_u32 s2, {PW+GW}")
o("  s_cbranch_scc1 K1_END")
stamp(0)
o("  s_load_dwordx8 s[8:15], s[0:1], 0")
o("  s_load_dwordx8 s[16:23], s[0:1], 32")
o("  s_load_dwordx2 s[24:25], s[0:1], 72")
o(f"  s_cmp_ge_u32 s2, {PW}")
o("  s_cbranch_scc1 K1_GEMM")

HIST = 0
OFFL = 1024
STG = 2048
o("  v_lshlrev_b32 v1, 4, v0")
o("  v_lshlrev_b32 v2, 3, v0")
o("  v_lshlrev_b32 v3, 2, v0")
o("  v_mov_b32 v4, 0")
o(f"  ds_write_b32 v3, v4 offset:{HIST}")
o(f"  s_mul_i32 s50, s2, {CH*4}")
o(f"  s_mul_i32 s54, s2, {CH*2}")
o(f"  s_add_u32 s51, s50, 6400")
o(f"  s_add_u32 s55, s54, 3200")
o("  s_mov_b32 s58, 21400")
o("  s_mov_b32 s59, -49")
o("  v_cmp_gt_u32 vcc, 400, v0")
o("  s_waitcnt lgkmcnt(0)")
srd(28, 14, 15, E*4)
srd(32, 12, 13, E*4)
srd(36, 10, 11, E*2)
o("  s_and_saveexec_b64 s[62:63], vcc")
o("  s_cbranch_execz K1_P_L0")
vD, vS, vE = 8, 16, 24
for r in range(2):
    o(f"  buffer_load_dwordx4 v[{vD+4*r}:{vD+4*r+3}], v1, s[28:31], s{50+r} offen")
for r in range(2):
    o(f"  buffer_load_dwordx4 v[{vS+4*r}:{vS+4*r+3}], v1, s[32:35], s{50+r} offen")
for r in range(2):
    o(f"  buffer_load_dwordx2 v[{vE+2*r}:{vE+2*r+1}], v2, s[36:39], s{54+r} offen")
o("K1_P_L0:")
o(f"  s_mul_i32 s60, s2, {CH*8}")
o(f"  s_add_u32 s60, s60, {REC_OFF}")
o("  s_add_u32 s40, s24, s60")
o("  s_addc_u32 s41, s25, 0")
o("  s_and_b32 s41, s41, 0xffff")
o(f"  s_mov_b32 s42, {CH*8}")
o("  s_mov_b32 s43, 0x00020000")
srd_off(44, 24, 25, OFFT_OFF, 257*1024)
o("  v_mov_b32 v5, 1")
o("  s_mov_b32 s61, 0xffff0000")
o("  s_barrier")
vA, vR, vL = 28, 36, 44
o("  s_waitcnt vmcnt(4)")
stamp(1)
for k in range(8):
    o(f"  v_mul_u32_u24 v6, s58, v{vD+k}")
    o(f"  v_lshrrev_b32 v6, 20, v6")
    o(f"  v_mad_i32_i24 v{vL+2*k+1}, v6, s59, v{vD+k}")
    o(f"  v_and_b32 v7, 7, v6")
    o(f"  v_lshrrev_b32 v6, 3, v6")
    o(f"  v_lshl_or_b32 v6, v7, 5, v6")
    o(f"  v_lshlrev_b32 v{vA+k}, 2, v6")
    o(f"  ds_add_rtn_u32 v{vR+k}, v{vA+k}, v5 offset:{HIST}")
o("  s_waitcnt lgkmcnt(0)")
o("  s_barrier")
stamp(2)
o("  s_waitcnt vmcnt(0)")
for k in range(8):
    r, j = k >> 2, k & 3
    ereg = vE + 2*r + (j >> 1)
    if j & 1 == 0:
        o(f"  v_lshl_or_b32 v{vL+2*k}, v{ereg}, 16, v{vS+k}")
    else:
        o(f"  v_and_or_b32 v{vL+2*k}, v{ereg}, s61, v{vS+k}")
o("  s_mov_b64 exec, s[62:63]")
o("  v_cmp_gt_u32 vcc, 64, v0")
o("  s_and_saveexec_b64 s[64:65], vcc")
o("  s_cbranch_execz K1_P_SCANDONE")
o(f"  ds_read_b128 v[60:63], v1 offset:{HIST}")
o("  s_waitcnt lgkmcnt(0)")
o("  v_add_u32 v65, v60, v61")
o("  v_add_u32 v66, v65, v62")
o("  v_add_u32 v67, v66, v63")
o("  v_mov_b32 v68, v67")
wave_scan(68)
o("  v_sub_u32 v68, v68, v67")
o("  v_add_u32 v69, v68, v60")
o("  v_add_u32 v70, v68, v65")
o("  v_add_u32 v71, v68, v66")
o(f"  ds_write_b128 v1, v[68:71] offset:{OFFL}")
o("  v_lshlrev_b32 v64, 12, v0")
o("  s_lshl_b32 s66, s2, 2")
for j in range(4):
    o(f"  buffer_store_dword v{68+j}, v64, s[44:47], s66 offen offset:{j*1024}")
o(f"  v_mov_b32 v72, {CH}")
o(f"  v_mov_b32 v73, {256*1024}")
o("  buffer_store_dword v72, v73, s[44:47], s66 offen")
o("K1_P_SCANDONE:")
o("  s_mov_b64 exec, s[64:65]")
o("  v_cmp_gt_u32 vcc, 400, v0")
o("  s_and_saveexec_b64 s[62:63], vcc")
o("  s_waitcnt lgkmcnt(0)")
o("  s_barrier")
stamp(3)
for k in range(8):
    o(f"  ds_read_b32 v{vD+k}, v{vA+k} offset:{OFFL}")
o("  s_waitcnt lgkmcnt(0)")
for k in range(8):
    o(f"  v_add_u32 v6, v{vD+k}, v{vR+k}")
    o(f"  v_lshlrev_b32 v6, 3, v6")
    o(f"  ds_write_b64 v6, v[{vL+2*k}:{vL+2*k+1}] offset:{STG}")
o("  s_mov_b64 exec, s[62:63]")
o("  s_waitcnt lgkmcnt(0)")
o("  s_barrier")
stamp(4)
for i in range(4):
    o(f"  ds_read_b128 v[{8+4*i}:{8+4*i+3}], v1 offset:{STG+8192*i}")
o("  v_add_u32 v2, 0x2000, v1")
o("  v_add_u32 v3, 0x4000, v1")
o("  v_add_u32 v4, 0x6000, v1")
for i in range(4):
    o(f"  s_waitcnt lgkmcnt({3-i})")
    o(f"  buffer_store_dwordx4 v[{8+4*i}:{8+4*i+3}], v{1+i}, s[40:43], 0 offen")
if DBG:
    o("  s_waitcnt vmcnt(0)")
    stamp(5)
    o("  s_waitcnt lgkmcnt(0)")
    o("  s_cmp_lg_u32 s2, {}".format(7))
    o("  s_cbranch_scc1 K1_END")
    o("  v_cmp_eq_u32 vcc, 0, v0")
    o("  s_and_saveexec_b64 s[70:71], vcc")
    o("  s_cbranch_execz K1_END")
    o("  s_load_dwordx2 s[72:73], s[0:1], 64")
    o("  s_waitcnt lgkmcnt(0)")
    srd(76, 72, 73, 256)
    o("  v_mov_b32 v1, 0")
    for i in range(1, 5+1):
        o(f"  s_sub_u32 s73, s{80+2*i}, s80")
        o(f"  v_mov_b32 v2, s73")
        o(f"  buffer_store_dword v2, v1, s[76:79], 0 offen offset:{4*i}")
o("  s_endpgm")

o("K1_GEMM:")
o(f"  s_sub_u32 s3, s2, {PW}")
o("  v_lshrrev_b32 v1, 6, v0")
o("  s_nop 0")
o("  v_readfirstlane_b32 s5, v1")
o("  v_and_b32 v2, 63, v0")
o("  v_and_b32 v3, 31, v2")
o("  v_lshrrev_b32 v4, 5, v2")
o("  v_lshlrev_b32 v10, 4, v0")
o("  s_and_b32 s6, s5, 1")
o("  s_lshr_b32 s26, s5, 1")
o("  s_lshl_b32 s4, s3, 2")
o("  s_add_u32 s4, s4, s26")
o("  s_lshl_b32 s4, s4, 5")
o("  s_waitcnt lgkmcnt(0)")
srd(28, 20, 21, 128*128)
srd(32, 18, 19, 8192)
srd(36, 8, 9, N*128)
XF = 16
WT = 32
WF = 48
AC = 80
o("  s_mov_b32 s26, 8192")
o(f"  buffer_load_dwordx4 v[{WT}:{WT+3}], v10, s[28:31], s26 offen")
o(f"  buffer_load_dwordx4 v[{WT+4}:{WT+7}], v10, s[32:35], 0 offen")
o("  v_add_u32 v7, s4, v3")
o("  v_lshlrev_b32 v7, 7, v7")
o("  v_lshl_add_u32 v7, v4, 4, v7")
for ks in range(4):
    o(f"  buffer_load_dwordx4 v[{XF+ks*4}:{XF+ks*4+3}], v7, s[36:39], 0 offen offset:{ks*32}")
srd_off(40, 24, 25, T_OFF, ROWS*256)
o("  v_lshlrev_b32 v5, 10, v4")
o("  v_bfe_u32 v6, v2, 2, 2")
o("  v_lshl_add_u32 v5, v6, 7, v5")
o("  v_bfe_u32 v6, v2, 4, 1")
o("  v_lshl_add_u32 v5, v6, 5, v5")
o("  v_and_b32 v6, 3, v2")
o("  v_lshl_add_u32 v5, v6, 3, v5")
o("  s_lshl_b32 s26, s6, 6")
o("  v_add_u32 v5, s26, v5")
for i in range(32):
    o(f"  v_mov_b32 v{AC+i}, 0")
o("  v_lshl_add_u32 v9, v4, 2, s4")
o("  v_lshlrev_b32 v9, 8, v9")
o("  v_lshl_add_u32 v9, v3, 2, v9")
o("  s_lshl_b32 s26, s6, 7")
o("  v_add_u32 v9, s26, v9")
for q in range(4):
    o(f"  s_mov_b32 s{64+q}, {(8*q)*256}")
o("  v_mov_b32 v12, 0x71800000")
o("  v_mov_b32 v11, 0xf1800000")
o("  s_waitcnt vmcnt(4)")
for idx, off in enumerate((0, 8192)):
    o(f"  ds_write_b128 v10, v[{WT+4*idx}:{WT+4*idx+3}] offset:{off}")
o("  s_waitcnt lgkmcnt(0)")
o("  s_barrier")
for m in range(2):
    for ks in range(4):
        for h in range(2):
            f = WF+m*16+ks*4+2*h
            o(f"  ds_read_b64_tr_b16 v[{f}:{f+1}], v5 offset:{m*8192 + ks*2048 + h*512}")
o("  s_waitcnt vmcnt(0) lgkmcnt(0)")
stamp(1)
for m in range(2):
    for ks in range(4):
        a = XF+ks*4
        b = WF+m*16+ks*4
        c = AC+m*16
        o(f"  v_mfma_f32_32x32x16_bf16 v[{c}:{c+15}], v[{a}:{a+3}], v[{b}:{b+3}], v[{c}:{c+15}]")
o("  s_nop 15")
o("  s_nop 3")
stamp(2)
for i in range(16):
    a1 = AC+i
    a2 = AC+16+i
    o(f"  v_mul_f32 v13, {NLOG2E:#x}, v{a1}")
    o(f"  v_med3_f32 v13, v13, v11, v12")
    o(f"  v_cvt_pk_bf16_f32 v13, v13, v13")
    o(f"  v_and_b32 v13, 0xffff, v13")
    o(f"  v_and_b32 v14, 0x7fffffff, v{a2}")
    o(f"  v_and_b32 v15, 0x80000000, v{a2}")
    o(f"  v_sub_u32 v14, v14, v13")
    o(f"  v_add_u32 v14, 0x8000, v14")
    o(f"  v_max_i32 v14, 0, v14")
    o(f"  v_min_i32 v14, 0x7f7fffff, v14")
    o(f"  v_and_b32 v14, 0xffff0000, v14")
    o(f"  v_or3_b32 v{a1}, v14, v15, v13")
    o(f"  buffer_store_dword v{a1}, v9, s[40:43], s{64+(i>>2)} offen offset:{(i&3)*256}")
if DBG:
    o("  s_waitcnt vmcnt(0)")
    stamp(3)
    o("  s_waitcnt lgkmcnt(0)")
    o("  s_cmp_lg_u32 s2, {}".format(PW+7))
    o("  s_cbranch_scc1 K1_END")
    o("  v_cmp_eq_u32 vcc, 0, v0")
    o("  s_and_saveexec_b64 s[70:71], vcc")
    o("  s_cbranch_execz K1_END")
    o("  s_load_dwordx2 s[72:73], s[0:1], 64")
    o("  s_waitcnt lgkmcnt(0)")
    srd(76, 72, 73, 256)
    o("  v_mov_b32 v1, 64")
    for i in range(1, 3+1):
        o(f"  s_sub_u32 s73, s{80+2*i}, s80")
        o(f"  v_mov_b32 v2, s73")
        o(f"  buffer_store_dword v2, v1, s[76:79], 0 offen offset:{4*i}")
o("K1_END:")
o("  s_endpgm")

L_HIST = 0
L_GOFF = 256
L_MISC = 512
L_HN = 576
L_HEAD = 1024
L_ACC = L_HEAD + 16*256
L_A = L_ACC + BN*256
L_U = L_A + 64*256
L_SORT = L_U + 64*256
L_X = 150 * 1024
L_W = L_HEAD
NIT = KSEG // 4
o(".globl mpnn_k2_kernel")
o(".p2align 8")
o(".type mpnn_k2_kernel,@function")
o("mpnn_k2_kernel:")
o(f"  s_cmp_ge_u32 s2, {NB}")
o("  s_cbranch_scc1 K2_END")
stamp(0)
o("  s_load_dwordx4 s[8:11], s[0:1], 48")
o("  s_load_dwordx2 s[12:13], s[0:1], 64")
o("  s_load_dwordx2 s[14:15], s[0:1], 32")
o("  s_load_dwordx2 s[16:17], s[0:1], 0")
o("  s_load_dwordx2 s[24:25], s[0:1], 72")
o("  v_lshrrev_b32 v1, 6, v0")
o("  v_and_b32 v2, 63, v0")
o("  v_readfirstlane_b32 s5, v1")
o("  v_lshlrev_b32 v3, 4, v0")
o("  v_lshrrev_b32 v4, 3, v0")
o("  v_and_b32 v5, 7, v0")
o("  v_lshlrev_b32 v5, 1, v5")
o("  v_and_b32 v6, 15, v2")
o("  v_lshlrev_b32 v6, 4, v6")
o("  v_lshlrev_b32 v7, 2, v4")
o("  s_and_b32 s7, s2, 7")
o("  s_lshl_b32 s7, s7, 5")
o("  s_lshr_b32 s58, s2, 3")
o("  s_or_b32 s7, s7, s58")
o("  s_lshl_b32 s7, s7, 10")
o(f"  s_mul_i32 s6, s2, {BN*256}")
o("  s_waitcnt lgkmcnt(0)")
srd(48, 8, 9, 129*128)
srd(44, 14, 15, 8192)
srd(40, 16, 17, N*128)
srd_off(28, 24, 25, OFFT_OFF, 257*1024)
o("  buffer_load_dword v8, v7, s[28:31], s7 offen")
o("  buffer_load_dword v9, v7, s[28:31], s7 offen offset:1024")
o("  buffer_load_dword v24, v7, s[28:31], s7 offen offset:512")
o("  buffer_load_dword v25, v7, s[28:31], s7 offen offset:1536")
srd_off(32, 24, 25, REC_OFF, PW*CH*8)
srd_off(36, 24, 25, T_OFF, ROWS)
o("  s_or_b32 s37, s37, 0x01000000")
srd(52, 10, 11, N*128)
o("  v_mov_b32 v120, 0")
o("  v_mov_b32 v121, 0")
o("  v_mov_b32 v122, 0")
o("  v_mov_b32 v123, 0")
o("  s_cmp_lg_u32 s5, 0")
o("  s_cbranch_scc1 K2_Z2")
o(f"  ds_write_b128 v3, v[120:123] offset:0")
o("K2_Z2:")
o("  v_lshrrev_b32 v10, 4, v2")
o("  v_and_b32 v11, 1, v10")
o("  v_lshlrev_b32 v11, 3, v11")
o("  v_lshrrev_b32 v10, 1, v10")
o("  v_lshl_add_u32 v11, v10, 2, v11")
o("  v_add_u32 v36, v11, v6")
o("  v_mov_b32 v27, 1")
o("  v_mov_b32 v32, 0x3f80")
o("  s_mov_b32 s60, 0")
o(f"  v_mov_b32 v11, {CH*8}")
o("  v_add_u32 v10, 128, v4")
o("  s_waitcnt vmcnt(0)")
stamp(1)
o("  v_sub_u32 v9, v9, v8")
o("  v_sub_u32 v25, v25, v24")
o(f"  v_cmp_gt_u32 vcc, {PW}, v10")
o("  v_add_u32 v8, v8, v5")
o("  v_add_u32 v24, v24, v5")
o("  v_cndmask_b32 v25, 0, v25, vcc")
o(f"  v_min_u32 v9, {CH}, v9")
o(f"  v_min_u32 v25, {CH}, v25")
o("  v_lshlrev_b32 v8, 3, v8")
o("  v_lshlrev_b32 v24, 3, v24")
o("  v_mad_u32_u24 v8, v4, v11, v8")
o("  v_mad_u32_u24 v24, v10, v11, v24")
o("  v_max_u32 v23, v9, v25")
o("  v_sub_u32 v26, v9, v5")
o("  v_sub_u32 v25, v25, v5")
RL = 40
RK = 64
REM = (26, 25)
ADR = (8, 24)
NI = KSEG // 16
o("K2_ROUND:")
for p in range(2):
    for it in range(NI):
        q = p*NI + it
        o(f"  v_cmpx_lt_i32 vcc, {16*it}, v{REM[p]}")
        o(f"  s_cbranch_execz K2_LD_DONE{p}")
        o(f"  buffer_load_dwordx4 v[{RL+4*q}:{RL+4*q+3}], v{ADR[p]}, s[32:35], 0 offen offset:{128*it}")
    o(f"K2_LD_DONE{p}:")
    o("  s_mov_b64 exec, -1")
o("  s_cmp_lg_u32 s60, 0")
o("  s_cbranch_scc1 K2_SETUP_SKIP")
o("  v_lshrrev_b32 v10, 1, v6")
o(f"  v_add_u32 v10, {128*128}, v10")
o("  buffer_load_dwordx2 v[20:21], v10, s[48:51], 0 offen")
o("  v_and_b32 v10, 0x1ff0, v3")
o("  s_cmp_ge_u32 s5, 8")
o("  s_cbranch_scc1 K2_W1")
o("  buffer_load_dwordx4 v[12:15], v10, s[48:51], 0 offen")
o(f"  s_mul_i32 s59, s2, {BN*128}")
o("  buffer_load_dwordx4 v[88:91], v3, s[40:43], s59 offen")
o("  s_waitcnt lgkmcnt(0)")
o("  s_barrier")
stamp(7)
o("  s_waitcnt vmcnt(3)")
o("  s_branch K2_W2")
o("K2_W1:")
o("  buffer_load_dwordx4 v[12:15], v10, s[44:47], 0 offen")
o("  s_waitcnt lgkmcnt(0)")
o("  s_barrier")
stamp(7)
o("  s_waitcnt vmcnt(2)")
o("K2_W2:")
o(f"  v_mov_b32 v11, {L_MISC}")
o("  ds_max_u32 v11, v23")
o("  s_branch K2_SETUP_DONE")
o("K2_SETUP_SKIP:")
o("  s_waitcnt lgkmcnt(0)")
o("  s_barrier")
o("  s_waitcnt vmcnt(0)")
o("K2_SETUP_DONE:")
stamp(2)
def rec_loop(tag, body):
    for p in range(2):
        for it in range(NI):
            for h in range(2):
                q = p*NI + it
                o(f"  v_cmpx_lt_i32 vcc, {16*it+h}, v{REM[p]}")
                o(f"  s_cbranch_execz K2_{tag}_DONE{p}")
                body(RL+4*q+2*h, 2*q+h)
        o(f"K2_{tag}_DONE{p}:")
        o("  s_mov_b64 exec, -1")
def b_at(r, i):
    o(f"  v_lshlrev_b32 v{r+1}, 2, v{r+1}")
    o(f"  ds_add_rtn_u32 v{RK+i}, v{r+1}, v27 offset:{L_HIST}")
rec_loop("AT", b_at)
o("  s_cmp_lg_u32 s60, 0")
o("  s_cbranch_scc1 K2_WST_SKIP")
o("  s_waitcnt vmcnt(0)")
o(f"  ds_write_b128 v3, v[12:15] offset:{L_W}")
o("  s_cmp_ge_u32 s5, 8")
o("  s_cbranch_scc1 K2_XST")
o("  v_lshrrev_b32 v10, 3, v0")
o("  v_lshl_add_u32 v10, v10, 4, v3")
o(f"  v_add_u32 v10, {L_X}, v10")
o("  ds_write_b128 v10, v[88:91]")
o("K2_XST:")
o("  v_lshlrev_b32 v28, 16, v20")
o("  v_and_b32 v29, 0xffff0000, v20")
o("  v_lshlrev_b32 v30, 16, v21")
o("  v_and_b32 v31, 0xffff0000, v21")
for j in range(4):
    o(f"  v_mul_f32 v{28+j}, {NLOG2E:#x}, v{28+j}")
o("K2_WST_SKIP:")
o("  s_waitcnt lgkmcnt(0)")
o("  s_barrier")
stamp(8)
o("  s_cmp_lg_u32 s60, 0")
o("  s_cbranch_scc1 K2_PF_SKIP")
o("  s_lshr_b32 s58, s2, 3")
o(f"  s_mul_i32 s58, s58, {392*256}")
for i in range(7 if EXP == "prefetch" else 0):
    o(f"  buffer_load_dwordx4 v[104:107], v3, s[36:39], s58 offen")
    o(f"  s_add_u32 s58, s58, 16384")

o("K2_PF_SKIP:")
o("  v_lshlrev_b32 v11, 2, v2")
o(f"  ds_read_b32 v37, v11 offset:{L_HIST}")
o(f"  v_cmp_gt_u32 s[56:57], {BN}, v2")
o("  s_waitcnt lgkmcnt(0)")
o("  v_add_u32 v34, 3, v37")
o("  v_and_b32 v34, -4, v34")
o("  v_max_u32 v34, 4, v34")
o("  v_cndmask_b32 v34, 0, v34, s[56:57]")
o("  v_mov_b32 v35, v34")
wave_scan(35)
o("  v_readlane_b32 s61, v35, 63")
o("  v_sub_u32 v35, v35, v34")
o("  s_add_u32 s62, s61, 15")
o("  s_and_b32 s62, s62, -16")
o("  v_mov_b32 v33, s62")
o("  s_nop 1")
o("  v_cndmask_b32 v33, v33, v35, s[56:57]")
o("  s_cmp_lg_u32 s5, 0")
o("  s_cbranch_scc1 K2_PAD_DONE")
o(f"  v_mov_b32 v38, {N}")
o("  v_mov_b32 v39, 0")
o("  v_add_u32 v10, v35, v37")
o("  v_lshlrev_b32 v10, 3, v10")
o("  v_sub_u32 v34, v34, v37")
for j in range(4):
    o(f"  v_cmpx_lt_u32 vcc, {j}, v34")
    o(f"  ds_write_b64 v10, v[38:39] offset:{L_SORT+8*j}")
o("  s_mov_b64 exec, -1")
o("  v_add_u32 v10, s61, v2")
o("  v_lshlrev_b32 v10, 3, v10")
o("  v_cmpx_gt_u32 vcc, 16, v2")
o(f"  ds_write_b64 v10, v[38:39] offset:{L_SORT}")
o("  s_mov_b64 exec, -1")
o("K2_PAD_DONE:")
for p in range(2):
    for it in range(NI):
        for h in range(2):
            q = p*NI + it
            r = RL+4*q+2*h
            o(f"  v_cmp_lt_i32 vcc, {16*it+h}, v{REM[p]}")
            o(f"  s_cbranch_vccz K2_SC1_DONE{p}")
            o(f"  ds_bpermute_b32 v{76+2*q+h}, v{r+1}, v33")
    o(f"K2_SC1_DONE{p}:")
o("  s_waitcnt lgkmcnt(0)")
def b_wr(r, i):
    o(f"  v_add_u32 v11, v{76+i}, v{RK+i}")
    o(f"  v_lshlrev_b32 v11, 3, v11")
    o(f"  v_and_b32 v{r+1}, 0xffff0000, v{r}")
    o(f"  v_and_b32 v{r}, 0x3fff, v{r}")
    o(f"  ds_write_b64 v11, v[{r}:{r+1}] offset:{L_SORT}")
rec_loop("SC2", b_wr)
stamp(9)
o("  v_readlane_b32 s62, v33, 49")
o("  s_lshr_b32 s63, s62, 4")
o("  s_mul_i32 s64, s63, s5")
o("  s_lshr_b32 s64, s64, 4")
o("  s_add_u32 s65, s5, 1")
o("  s_mul_i32 s65, s63, s65")
o("  s_lshr_b32 s65, s65, 4")
o("  s_lshl_b32 s66, s64, 4")
o("  s_lshl_b32 s67, s65, 4")
o(f"  v_cmp_gt_u32 s[56:57], {BN}, v2")
o("  v_cmp_ge_u32 vcc, s66, v33")
o("  s_and_b64 vcc, vcc, s[56:57]")
o("  s_bcnt1_i32_b64 s68, vcc")
o("  s_sub_u32 s68, s68, 1")
o("  s_add_u32 s69, s68, 1")
o("  v_readlane_b32 s70, v33, s69")
o("  v_readlane_b32 s72, v33, s68")
o("  s_cmp_lg_u32 s72, s66")
o("  s_cselect_b32 s73, 1, 0")
o("  s_cmp_ge_u32 s64, s65")
o("  s_cselect_b32 s73, 0, s73")
o("  s_cmp_lg_u32 s73, 0")
o("  s_cselect_b32 s74, s68, -1")
o("  v_mov_b32 v11, s74")
o("  s_lshl_b32 s74, s5, 2")
o("  v_mov_b32 v10, s74")
o(f"  ds_write_b32 v10, v11 offset:{L_HN}")
o("  s_waitcnt lgkmcnt(0)")
o("  s_barrier")
stamp(3)
if DBG:
    pass
AV = 40
AC2 = 44
RB = 48
EBL = [12,13,14,15, 20,21,22,23, 4,5,9,10]
WB = 72
TT = 120
NBUF = 3
VRA = 34
VAA = 35
VRB = 37
o("  v_lshrrev_b32 v11, 4, v2")
o("  v_lshlrev_b32 v11, 3, v11")
o("  s_lshl_b32 s71, s66, 3")
o(f"  v_add_u32 v{VRA}, s71, v11")
o("  v_mov_b32 v38, 1.0")
o("  v_mov_b32 v39, 1.0")
for b in range(NBUF):
    for g in range(4):
        o(f"  v_mov_b32 v{RB+b*8+g*2+1}, v6")
def rec_read(bf):
    for g in range(4):
        o(f"  ds_read_b32 v{RB+bf*8+g*2}, v{VRA} offset:{L_SORT+32*g}")
        o(f"  ds_read_b32 v{EBL[bf*4+g]}, v{VRA} offset:{L_SORT+32*g+4}")
    o(f"  v_add_u32 v{VRA}, 128, v{VRA}")
def issue(bf):
    for g in range(4):
        r = RB+bf*8+g*2
        if EXP == "samerow":
            o(f"  v_mov_b32 v{r}, 0")
        if EXP != "noload":
            o(f"  buffer_load_dwordx4 v[{WB+bf*16+g*4}:{WB+bf*16+g*4+3}], v[{r}:{r+1}], s[36:39], 0 idxen offen")
        o(f"  ds_read_b32 v{r}, v{VRB} offset:{L_SORT+32*g}")
    o(f"  v_add_u32 v{VRB}, 128, v{VRB}")
uid = [0]
def compute(bf):
    for g in range(4):
        e = EBL[bf*4+g]
        ep, es = e & ~1, e & 1
        w = WB+bf*16+g*4
        t = TT + (g & 1)*4
        o(f"  s_waitcnt vmcnt({4*(NBUF-1) + 3 - g})")
        for j in (0, 2):
            o(f"  v_pk_fma_f32 v[{t+j}:{t+j+1}], v[{ep}:{ep+1}], v[{28+j}:{29+j}], v[{AV+j}:{AV+j+1}] op_sel:[{es},0,0] op_sel_hi:[{es},1,1]")
        o(f"  ds_read_b32 v{e}, v{VRA} offset:{L_SORT+32*g+4}")
        for j in range(4):
            o(f"  v_dot2_f32_bf16 v{t+j}, v{w+j}, v32, v{t+j}")
        if EXP != "nocompute":
            for j in range(4):
                o(f"  v_exp_f32 v{t+j}, v{t+j}")
            o("  s_nop 0")
            for j in (0, 2):
                o(f"  v_pk_add_f32 v[{t+j}:{t+j+1}], v[{t+j}:{t+j+1}], v[38:39]")
            for j in range(4):
                o(f"  v_rcp_f32 v{t+j}, v{t+j}")
        o("  s_add_u32 s66, s66, 4")
        for j in (0, 2):
            o(f"  v_pk_fma_f32 v[{AC2+j}:{AC2+j+1}], v[{t+j}:{t+j+1}], v[{w+j}:{w+j+1}], v[{AC2+j}:{AC2+j+1}]")
        uid[0] += 1
        u = uid[0]
        o("  s_cmp_lg_u32 s66, s70")
        o(f"  s_cbranch_scc1 K2_NF{u}")
        o("  s_getpc_b64 s[76:77]")
        o("  s_add_u32 s76, s76, 12")
        o("  s_addc_u32 s77, s77, 0")
        o("  s_branch K2_FLUSH")
        o(f"K2_NF{u}:")
    o(f"  v_add_u32 v{VRA}, 128, v{VRA}")
for b in range(NBUF):
    rec_read(b)
o(f"  v_mov_b32 v{VRB}, v{VRA}")
o("  s_waitcnt lgkmcnt(0)")
for b in range(NBUF-1):
    issue(b)
o("  s_cmp_lg_u32 s60, 0")
o("  s_cbranch_scc1 K2_MM_SKIP")
o("  s_cmp_ge_u32 s5, 8")
o("  s_cbranch_scc1 K2_MM_DONE")
ACM = 104
o("  v_lshrrev_b32 v1, 5, v2")
o("  v_lshlrev_b32 v7, 10, v1")
o("  v_bfe_u32 v11, v2, 2, 2")
o("  v_lshl_add_u32 v7, v11, 7, v7")
o("  v_bfe_u32 v11, v2, 4, 1")
o("  v_lshl_add_u32 v7, v11, 5, v7")
o("  v_and_b32 v11, 3, v2")
o("  v_lshl_add_u32 v7, v11, 3, v7")
o("  s_and_b32 s58, s5, 1")
o("  s_bfe_u32 s59, s5, 0x10001")
o("  s_lshl_b32 s78, s58, 6")
o("  s_lshl_b32 s79, s59, 13")
o("  s_add_u32 s78, s78, s79")
o("  v_add_u32 v7, s78, v7")
o("  s_lshr_b32 s78, s5, 2")
o(f"  s_mul_i32 s78, s78, {32*144}")
o(f"  s_add_u32 s78, s78, {L_X}")
o("  v_and_b32 v11, 31, v2")
o("  v_mul_u32_u24 v11, 144, v11")
o("  v_lshl_add_u32 v11, v1, 4, v11")
o("  v_add_u32 v11, s78, v11")
for i in range(16):
    o(f"  v_mov_b32 v{ACM+i}, 0")
for half in range(2):
    for k2 in range(2):
        ks = half*2 + k2
        for h in range(2):
            f = 40+k2*4+2*h
            o(f"  ds_read_b64_tr_b16 v[{f}:{f+1}], v7 offset:{L_W + ks*2048 + h*512}")
        o(f"  ds_read_b128 v[{120+k2*4}:{123+k2*4}], v11 offset:{ks*32}")
    o("  s_waitcnt lgkmcnt(0)")
    for k2 in range(2):
        o(f"  v_mfma_f32_32x32x16_bf16 v[{ACM}:{ACM+15}], v[{120+k2*4}:{123+k2*4}], v[{40+k2*4}:{43+k2*4}], v[{ACM}:{ACM+15}]")
    o("  s_nop 7")
o("  s_lshr_b32 s78, s5, 2")
o("  s_lshl_b32 s78, s78, 13")
o("  s_lshl_b32 s79, s58, 7")
o("  s_add_u32 s78, s78, s79")
o("  s_lshl_b32 s79, s59, 14")
o("  s_add_u32 s78, s78, s79")
o("  v_lshlrev_b32 v7, 10, v1")
o("  v_and_b32 v11, 31, v2")
o("  v_lshl_add_u32 v7, v11, 2, v7")
o("  v_add_u32 v7, s78, v7")
o(f"  s_cmp_eq_u32 s59, 0")
o(f"  s_cselect_b32 s79, {NLOG2E:#x}, 1.0")
o("  v_mov_b32 v11, s79")
o("  s_nop 7")
for i in range(16):
    o(f"  v_mul_f32 v{ACM+i}, v{ACM+i}, v11")
    o(f"  ds_write_b32 v7, v{ACM+i} offset:{L_A + ((i&3) + 8*(i>>2))*256}")
o("K2_MM_DONE:")
o("  s_waitcnt lgkmcnt(0)")
o("  s_barrier")
o("K2_MM_SKIP:")
o("  s_cmp_ge_u32 s64, s65")
o("  s_cbranch_scc1 K2_NOFINAL")
o("  s_lshl_b32 s71, s68, 8")
o(f"  v_add_u32 v{VAA}, s71, v6")
o(f"  ds_read_b128 v[{AV}:{AV+3}], v{VAA} offset:{L_A}")
for j in range(4):
    o(f"  v_mov_b32 v{AC2+j}, 0")
o("  s_setprio 3")
pid = [0]
def prio_update():
    if not PRIO:
        return
    pid[0] += 1
    u = pid[0]
    o("  s_sub_u32 s78, s67, s66")
    o(f"  s_cmp_gt_u32 s78, {16*P3}")
    o(f"  s_cbranch_scc1 K2_PD{u}")
    o(f"  s_cmp_gt_u32 s78, {16*P2}")
    o(f"  s_cbranch_scc1 K2_PA{u}")
    o(f"  s_cmp_gt_u32 s78, {16*P1}")
    o(f"  s_cbranch_scc1 K2_PB{u}")
    o("  s_setprio 0")
    o(f"  s_branch K2_PD{u}")
    o(f"K2_PA{u}:")
    o("  s_setprio 2")
    o(f"  s_branch K2_PD{u}")
    o(f"K2_PB{u}:")
    o("  s_setprio 1")
    o(f"K2_PD{u}:")
o("K2_LOOP:")
for b in range(NBUF):
    o("  s_waitcnt lgkmcnt(0)")
    issue((b + NBUF - 1) % NBUF)
    compute(b)
    prio_update()
    if b < NBUF-1:
        o("  s_cmp_ge_u32 s66, s67")
        o("  s_cbranch_scc1 K2_LOOP_EXIT")
o("  s_cmp_lt_u32 s66, s67")
o("  s_cbranch_scc1 K2_LOOP")
o("K2_LOOP_EXIT:")
o("  s_setprio 0")
o("  v_readlane_b32 s72, v33, s68")
o("  s_cmp_ge_u32 s72, s67")
o("  s_cbranch_scc1 K2_NOFINAL")
o("  s_getpc_b64 s[76:77]")
o("  s_add_u32 s76, s76, 12")
o("  s_addc_u32 s77, s77, 0")
o("  s_branch K2_FLUSH")
o("K2_NOFINAL:")
o("  s_waitcnt vmcnt(0) lgkmcnt(0)")
o("K2_MAIN_DONE:")
stamp(4)
o(f"  v_mov_b32 v11, {L_MISC}")
o("  ds_read_b32 v34, v11")
o("  s_barrier")
o("  v_lshlrev_b32 v10, 2, v2")
o(f"  ds_read_b32 v35, v10 offset:{L_HN}")
o(f"  ds_read_b32 v11, v10 offset:{L_HN-4}")
o("  s_lshl_b32 s71, s5, 8")
o("  v_add_u32 v20, s71, v36")
o(f"  ds_read_b32 v21, v20 offset:{L_HEAD}")
o("  s_waitcnt lgkmcnt(0)")
o("  v_readfirstlane_b32 s61, v34")
o(f"  s_min_u32 s61, s61, {CH}")
o("  v_cmp_eq_u32 vcc, v35, v11")
o("  v_cmp_ne_u32 s[56:57], -1, v35")
o("  s_and_b64 vcc, vcc, s[56:57]")
o("  s_and_b32 s72, vcc_lo, 0xfffe")
o("  s_cmp_lg_u32 s72, 0")
o("  s_cbranch_scc1 K2_CB_SLOW")
o("  s_cmp_lt_u32 s63, 16")
o("  s_cbranch_scc1 K2_CB_SLOW")
o("  v_readlane_b32 s72, v35, s5")
o("  s_cmp_eq_u32 s72, -1")
o("  s_cbranch_scc1 K2_CB_F1")
o("  s_lshl_b32 s72, s72, 8")
o("  v_add_u32 v20, s72, v36")
o(f"  ds_read_b32 v22, v20 offset:{L_ACC}")
o("  s_waitcnt lgkmcnt(0)")
o("  v_add_f32 v22, v22, v21")
o(f"  ds_write_b32 v20, v22 offset:{L_ACC}")
o("  s_waitcnt lgkmcnt(0)")
o("K2_CB_F1:")
o("  s_barrier")
o(f"  ds_read_b128 v[12:15], v3 offset:{L_ACC}")
o(f"  ds_read_b128 v[16:19], v3 offset:{L_U}")
o("  s_waitcnt lgkmcnt(0)")
o("  s_branch K2_CB_DONE")
o("K2_CB_SLOW:")
o(f"  ds_read_b128 v[12:15], v3 offset:{L_ACC}")
o(f"  ds_read_b128 v[16:19], v3 offset:{L_U}")
o("  v_lshrrev_b32 v10, 4, v0")
o("  s_waitcnt lgkmcnt(0)")
for w in range(16):
    o(f"  v_readlane_b32 s72, v35, {w}")
    o("  s_nop 1")
    o("  v_cmpx_eq_u32 vcc, s72, v10")
    o(f"  s_cbranch_execz K2_CB{w}")
    o(f"  ds_read_b128 v[20:23], v6 offset:{L_HEAD+256*w}")
    o("  s_waitcnt lgkmcnt(0)")
    for j in range(4):
        o(f"  v_add_f32 v{12+j}, v{12+j}, v{20+j}")
    o(f"K2_CB{w}:")
    o("  s_mov_b64 exec, -1")
o("K2_CB_DONE:")
o(f"  s_add_u32 s60, s60, {KSEG}")
o("  s_cmp_ge_u32 s60, s61")
o("  s_cbranch_scc1 K2_FINAL")
o("  v_cmp_gt_u32 vcc, 784, v0")
o("  s_and_saveexec_b64 s[56:57], vcc")
o("  s_cbranch_execz K2_NR0")
o(f"  ds_write_b128 v3, v[12:15] offset:{L_ACC}")
o("K2_NR0:")
o("  s_mov_b64 exec, s[56:57]")
o("  s_cmp_lg_u32 s5, 0")
o("  s_cbranch_scc1 K2_NR1")
o("  v_lshlrev_b32 v11, 2, v2")
o("  v_mov_b32 v34, 0")
o(f"  ds_write_b32 v11, v34 offset:{L_HIST}")
o("K2_NR1:")
o(f"  v_subrev_u32 v26, {KSEG}, v26")
o(f"  v_subrev_u32 v25, {KSEG}, v25")
o(f"  v_add_u32 v8, {KSEG*8}, v8")
o(f"  v_add_u32 v24, {KSEG*8}, v24")
o("  s_branch K2_ROUND")
o("K2_FINAL:")
stamp(5)
if DBG:
    pass
o("  v_cmp_gt_u32 vcc, 784, v0")
o("  s_and_saveexec_b64 s[56:57], vcc")
o("  s_cbranch_execz K2_FIN2")
o("  v_lshlrev_b32 v11, 3, v0")
o(f"  s_mul_i32 s6, s2, {BN*128}")
for j in range(4):
    o(f"  v_add_f32 v{12+j}, v{12+j}, v{16+j}")
for j in range(4):
    o(f"  v_mul_f32 v{20+j}, {NLOG2E:#x}, v{12+j}")
for j in range(4):
    o(f"  v_exp_f32 v{20+j}, v{20+j}")
for j in range(4):
    o(f"  v_add_f32 v{20+j}, 1.0, v{20+j}")
for j in range(4):
    o(f"  v_rcp_f32 v{20+j}, v{20+j}")
o("  s_nop 0")
for j in range(4):
    o(f"  v_mul_f32 v{12+j}, v{12+j}, v{20+j}")
o("  v_cvt_pk_bf16_f32 v12, v12, v13")
o("  v_cvt_pk_bf16_f32 v13, v14, v15")
o("  buffer_store_dwordx2 v[12:13], v11, s[52:55], s6 offen")
o("K2_FIN2:")
o("  s_mov_b64 exec, -1")
if DBG:
    stamp(6)
    o("  s_waitcnt lgkmcnt(0)")
    o("  s_cmp_lg_u32 s2, 5")
    o("  s_cbranch_scc1 K2_END")
    o("  s_lshl_b32 s72, s5, 4")
    srd(76, 12, 13, 256)
    o("  v_mov_b32 v1, s72")
    for n, i in enumerate(STAMPS):
        o(f"  s_sub_u32 s73, s{80+2*i}, s80")
        o(f"  v_mov_b32 v2, s73")
        o(f"  buffer_store_dword v2, v1, s[76:79], 0 offen offset:{4*n}")
o("K2_END:")
o("  s_endpgm")
o("K2_FLUSH:")
o("  s_nop 1")
o(f"  v_permlane32_swap_b32 v{AC2}, v{AC2+1}")
o(f"  v_permlane32_swap_b32 v{AC2+2}, v{AC2+3}")
o("  s_lshl_b32 s71, s68, 8")
o(f"  v_add_u32 v{VAA}, s71, v6")
o(f"  v_add_f32 v{AC2}, v{AC2}, v{AC2+1}")
o(f"  v_add_f32 v{AC2+2}, v{AC2+2}, v{AC2+3}")
o(f"  ds_read_b128 v[{AV}:{AV+3}], v{VAA} offset:{L_A+256}")
o(f"  v_add_u32 v{VAA}, s71, v36")
o(f"  v_permlane16_swap_b32 v{AC2}, v{AC2+2}")
o("  s_cmp_lg_u32 s73, 0")
o("  s_cbranch_scc1 K2_FL_HEAD")
o(f"  v_add_f32 v{AC2}, v{AC2}, v{AC2+2}")
o("  s_cmp_eq_u32 s60, 0")
o("  s_cbranch_scc1 K2_FL_W")
o(f"  ds_read_b32 v{AC2+1}, v{VAA} offset:{L_ACC}")
o("  s_waitcnt lgkmcnt(0)")
o(f"  v_add_f32 v{AC2}, v{AC2}, v{AC2+1}")
o("K2_FL_W:")
o(f"  ds_write_b32 v{VAA}, v{AC2} offset:{L_ACC}")
o("  s_branch K2_FL_C")
o("K2_FL_HEAD:")
o(f"  v_add_f32 v{AC2}, v{AC2}, v{AC2+2}")
o("  s_lshl_b32 s71, s5, 8")
o(f"  v_add_u32 v{VAA}, s71, v36")
o(f"  ds_write_b32 v{VAA}, v{AC2} offset:{L_HEAD}")
o("  s_mov_b32 s73, 0")
o("K2_FL_C:")
o("  s_add_u32 s68, s68, 1")
o("  s_add_u32 s69, s68, 1")
o("  v_readlane_b32 s70, v33, s69")
o("  s_waitcnt lgkmcnt(0)")
for j in range(4):
    o(f"  v_mov_b32 v{AC2+j}, 0")
o("  s_setpc_b64 s[76:77]")

o('.section .rodata,"a"')
for name, vg in (("mpnn_k1_kernel", 112), ("mpnn_k2_kernel", 128)):
    o(".p2align 6")
    o(f".amdhsa_kernel {name}")
    o(f"  .amdhsa_next_free_vgpr {vg}")
    o("  .amdhsa_next_free_sgpr 102")
    o(f"  .amdhsa_accum_offset {vg}")
    o("  .amdhsa_group_segment_fixed_size 0")
    o("  .amdhsa_kernarg_size 80")
    o("  .amdhsa_user_sgpr_count 2")
    o("  .amdhsa_user_sgpr_kernarg_segment_ptr 1")
    o("  .amdhsa_system_sgpr_workgroup_id_x 1")
    o(".end_amdhsa_kernel")

import re
_i = out.index("mpnn_k2_kernel:")
for _k in range(_i):
    if out[_k].lstrip().startswith("buffer_store_dword"):
        out[_k] += " sc1"
open(sys.argv[1] if len(sys.argv) > 1 else "standalone__edge_featured_mpnn_egc__graph.s", "w").write("\n".join(out) + "\n")
```

```python
import sys

N = 12500
E = 800000
NB = 256
BN = 49
PW = 250
CH = 3200
GW = 98
ROWS = 12544
KSEG = 48
T_OFF = 0
A_OFF = 4 << 20
U_OFF = 8 << 20
REC_OFF = 12 << 20
OFFT_OFF = 20 << 20
NLOG2E = 0xbfb8aa3b

import os
DBG = int(os.environ.get("DBG","0"))
EXP = os.environ.get("EXP","")
PRIO = int(os.environ.get("PRIO","1"))
STAMPS = [int(x) for x in os.environ.get("STAMPS","2,3,4,5").split(",")]
P1, P2, P3 = [int(x) for x in os.environ.get("PTH","1,3,6").split(",")]
out = []
def stamp(i):
    if DBG:
        o(f"  s_memtime s[{80+2*i}:{81+2*i}]")
def o(s=""):
    out.append(s)

def srd(d, lo, hi, size):
    o(f"  s_mov_b32 s{d}, s{lo}")
    o(f"  s_and_b32 s{d+1}, s{hi}, 0xffff")
    o(f"  s_mov_b32 s{d+2}, {size}")
    o(f"  s_mov_b32 s{d+3}, 0x00020000")

def srd_off(d, lo, hi, off, size):
    o(f"  s_add_u32 s{d}, s{lo}, {off}")
    o(f"  s_addc_u32 s{d+1}, s{hi}, 0")
    o(f"  s_and_b32 s{d+1}, s{d+1}, 0xffff")
    o(f"  s_mov_b32 s{d+2}, {size}")
    o(f"  s_mov_b32 s{d+3}, 0x00020000")

def wave_scan(v, tmp=None):
    for sh in (1, 2, 4, 8):
        o("  s_nop 1")
        o(f"  v_add_u32_dpp v{v}, v{v}, v{v} row_shr:{sh} row_mask:0xf bank_mask:0xf")
    o("  s_nop 1")
    o(f"  v_add_u32_dpp v{v}, v{v}, v{v} row_bcast:15 row_mask:0xa bank_mask:0xf")
    o("  s_nop 1")
    o(f"  v_add_u32_dpp v{v}, v{v}, v{v} row_bcast:31 row_mask:0xc bank_mask:0xf")
    o("  s_nop 1")

K2_LDS = 160 * 1024
K1_LDS = 36 * 1024
o(f"; @launch kernel=mpnn_k1_kernel grid=({PW+GW},1,1) block=(512,1,1) lds={K1_LDS}")
o(f"; @launch kernel=mpnn_k2_kernel grid=({NB},1,1) block=(1024,1,1) lds={K2_LDS}")
o('.amdgcn_target "amdgcn-amd-amdhsa--gfx950"')
o(".text")

o(".globl mpnn_k1_kernel")
o(".p2align 8")
o(".type mpnn_k1_kernel,@function")
o("mpnn_k1_kernel:")
o(f"  s_cmp_ge_u32 s2, {PW+GW}")
o("  s_cbranch_scc1 K1_END")
stamp(0)
if os.environ.get("GFIRST"):
    o(f"  s_add_u32 s3, s2, {PW}")
    o(f"  s_sub_u32 s4, s2, {GW}")
    o(f"  s_cmp_lt_u32 s2, {GW}")
    o("  s_cselect_b32 s2, s3, s4")
o("  s_load_dwordx8 s[8:15], s[0:1], 0")
o("  s_load_dwordx8 s[16:23], s[0:1], 32")
o("  s_load_dwordx2 s[24:25], s[0:1], 72")
o(f"  s_cmp_ge_u32 s2, {PW}")
o("  s_cbranch_scc1 K1_GEMM")

HIST = 0
OFFL = 1024
STG = 2048
o("  v_lshlrev_b32 v1, 4, v0")
o("  v_lshlrev_b32 v2, 3, v0")
o("  v_lshlrev_b32 v3, 2, v0")
o("  v_mov_b32 v4, 0")
o(f"  ds_write_b32 v3, v4 offset:{HIST}")
o(f"  s_mul_i32 s50, s2, {CH*4}")
o(f"  s_mul_i32 s54, s2, {CH*2}")
o(f"  s_add_u32 s51, s50, 6400")
o(f"  s_add_u32 s55, s54, 3200")
o("  s_mov_b32 s58, 21400")
o("  s_mov_b32 s59, -49")
o("  v_cmp_gt_u32 vcc, 400, v0")
o("  s_waitcnt lgkmcnt(0)")
srd(28, 14, 15, E*4)
srd(32, 12, 13, E*4)
srd(36, 10, 11, E*2)
o("  s_and_saveexec_b64 s[62:63], vcc")
o("  s_cbranch_execz K1_P_L0")
vD, vS, vE = 8, 16, 24
for r in range(2):
    o(f"  buffer_load_dwordx4 v[{vD+4*r}:{vD+4*r+3}], v1, s[28:31], s{50+r} offen")
for r in range(2):
    o(f"  buffer_load_dwordx4 v[{vS+4*r}:{vS+4*r+3}], v1, s[32:35], s{50+r} offen")
for r in range(2):
    o(f"  buffer_load_dwordx2 v[{vE+2*r}:{vE+2*r+1}], v2, s[36:39], s{54+r} offen")
o("K1_P_L0:")
o(f"  s_mul_i32 s60, s2, {CH*8}")
o(f"  s_add_u32 s60, s60, {REC_OFF}")
o("  s_add_u32 s40, s24, s60")
o("  s_addc_u32 s41, s25, 0")
o("  s_and_b32 s41, s41, 0xffff")
o(f"  s_mov_b32 s42, {CH*8}")
o("  s_mov_b32 s43, 0x00020000")
srd_off(44, 24, 25, OFFT_OFF, 257*1024)
o("  v_mov_b32 v5, 1")
o("  s_mov_b32 s61, 0xffff0000")
o("  s_barrier")
vA, vR, vL = 28, 36, 44
o("  s_waitcnt vmcnt(4)")
stamp(1)
for k in range(8):
    o(f"  v_mul_u32_u24 v6, s58, v{vD+k}")
    o(f"  v_lshrrev_b32 v6, 20, v6")
    o(f"  v_mad_i32_i24 v{vL+2*k+1}, v6, s59, v{vD+k}")
    o(f"  v_and_b32 v7, 7, v6")
    o(f"  v_lshrrev_b32 v6, 3, v6")
    o(f"  v_lshl_or_b32 v6, v7, 5, v6")
    o(f"  v_lshlrev_b32 v{vA+k}, 2, v6")
    o(f"  ds_add_rtn_u32 v{vR+k}, v{vA+k}, v5 offset:{HIST}")
o("  s_waitcnt lgkmcnt(0)")
o("  s_barrier")
stamp(2)
o("  s_waitcnt vmcnt(0)")
for k in range(8):
    r, j = k >> 2, k & 3
    ereg = vE + 2*r + (j >> 1)
    if j & 1 == 0:
        o(f"  v_lshl_or_b32 v{vL+2*k}, v{ereg}, 16, v{vS+k}")
    else:
        o(f"  v_and_or_b32 v{vL+2*k}, v{ereg}, s61, v{vS+k}")
o("  s_mov_b64 exec, s[62:63]")
o("  v_cmp_gt_u32 vcc, 64, v0")
o("  s_and_saveexec_b64 s[64:65], vcc")
o("  s_cbranch_execz K1_P_SCANDONE")
o(f"  ds_read_b128 v[60:63], v1 offset:{HIST}")
o("  s_waitcnt lgkmcnt(0)")
o("  v_add_u32 v65, v60, v61")
o("  v_add_u32 v66, v65, v62")
o("  v_add_u32 v67, v66, v63")
o("  v_mov_b32 v68, v67")
wave_scan(68)
o("  v_sub_u32 v68, v68, v67")
o("  v_add_u32 v69, v68, v60")
o("  v_add_u32 v70, v68, v65")
o("  v_add_u32 v71, v68, v66")
o(f"  ds_write_b128 v1, v[68:71] offset:{OFFL}")
o("  v_lshlrev_b32 v64, 12, v0")
o("  s_lshl_b32 s66, s2, 2")
for j in range(4):
    o(f"  buffer_store_dword v{68+j}, v64, s[44:47], s66 offen offset:{j*1024}")
o(f"  v_mov_b32 v72, {CH}")
o(f"  v_mov_b32 v73, {256*1024}")
o("  buffer_store_dword v72, v73, s[44:47], s66 offen")
o("K1_P_SCANDONE:")
o("  s_mov_b64 exec, s[64:65]")
o("  v_cmp_gt_u32 vcc, 400, v0")
o("  s_and_saveexec_b64 s[62:63], vcc")
o("  s_waitcnt lgkmcnt(0)")
o("  s_barrier")
stamp(3)
for k in range(8):
    o(f"  ds_read_b32 v{vD+k}, v{vA+k} offset:{OFFL}")
o("  s_waitcnt lgkmcnt(0)")
for k in range(8):
    o(f"  v_add_u32 v6, v{vD+k}, v{vR+k}")
    o(f"  v_lshlrev_b32 v6, 3, v6")
    o(f"  ds_write_b64 v6, v[{vL+2*k}:{vL+2*k+1}] offset:{STG}")
o("  s_mov_b64 exec, s[62:63]")
o("  s_waitcnt lgkmcnt(0)")
o("  s_barrier")
stamp(4)
for i in range(4):
    o(f"  ds_read_b128 v[{8+4*i}:{8+4*i+3}], v1 offset:{STG+8192*i}")
o("  v_add_u32 v2, 0x2000, v1")
o("  v_add_u32 v3, 0x4000, v1")
o("  v_add_u32 v4, 0x6000, v1")
for i in range(4):
    o(f"  s_waitcnt lgkmcnt({3-i})")
    o(f"  buffer_store_dwordx4 v[{8+4*i}:{8+4*i+3}], v{1+i}, s[40:43], 0 offen")
if DBG:
    o("  s_waitcnt vmcnt(0)")
    stamp(5)
    o("  s_waitcnt lgkmcnt(0)")
    o("  s_cmp_lg_u32 s2, {}".format(7))
    o("  s_cbranch_scc1 K1_END")
    o("  v_cmp_eq_u32 vcc, 0, v0")
    o("  s_and_saveexec_b64 s[70:71], vcc")
    o("  s_cbranch_execz K1_END")
    o("  s_load_dwordx2 s[72:73], s[0:1], 64")
    o("  s_waitcnt lgkmcnt(0)")
    srd(76, 72, 73, 256)
    o("  v_mov_b32 v1, 0")
    for i in range(1, 5+1):
        o(f"  s_sub_u32 s73, s{80+2*i}, s80")
        o(f"  v_mov_b32 v2, s73")
        o(f"  buffer_store_dword v2, v1, s[76:79], 0 offen offset:{4*i}")
o("  s_endpgm")

o("K1_GEMM:")
o(f"  s_sub_u32 s3, s2, {PW}")
o("  v_lshrrev_b32 v1, 6, v0")
o("  s_nop 0")
o("  v_readfirstlane_b32 s5, v1")
o("  v_and_b32 v2, 63, v0")
o("  v_and_b32 v3, 31, v2")
o("  v_lshrrev_b32 v4, 5, v2")
o("  v_lshlrev_b32 v10, 4, v0")
o("  s_and_b32 s6, s5, 1")
o("  s_lshr_b32 s26, s5, 1")
o("  s_lshl_b32 s4, s3, 2")
o("  s_add_u32 s4, s4, s26")
o("  s_lshl_b32 s4, s4, 5")
o("  s_waitcnt lgkmcnt(0)")
srd(28, 20, 21, 128*128)
srd(32, 18, 19, 8192)
srd(36, 8, 9, N*128)
XF = 16
WT = 32
WF = 48
AC = 80
o("  s_mov_b32 s26, 8192")
o(f"  buffer_load_dwordx4 v[{WT}:{WT+3}], v10, s[28:31], s26 offen")
o(f"  buffer_load_dwordx4 v[{WT+4}:{WT+7}], v10, s[32:35], 0 offen")
o("  v_add_u32 v7, s4, v3")
o("  v_lshlrev_b32 v7, 7, v7")
o("  v_lshl_add_u32 v7, v4, 4, v7")
for ks in range(4):
    o(f"  buffer_load_dwordx4 v[{XF+ks*4}:{XF+ks*4+3}], v7, s[36:39], 0 offen offset:{ks*32}")
srd_off(40, 24, 25, T_OFF, ROWS*256)
o("  v_lshlrev_b32 v5, 10, v4")
o("  v_bfe_u32 v6, v2, 2, 2")
o("  v_lshl_add_u32 v5, v6, 7, v5")
o("  v_bfe_u32 v6, v2, 4, 1")
o("  v_lshl_add_u32 v5, v6, 5, v5")
o("  v_and_b32 v6, 3, v2")
o("  v_lshl_add_u32 v5, v6, 3, v5")
o("  s_lshl_b32 s26, s6, 6")
o("  v_add_u32 v5, s26, v5")
for i in range(32):
    o(f"  v_mov_b32 v{AC+i}, 0")
o("  v_lshl_add_u32 v9, v4, 2, s4")
o("  v_lshlrev_b32 v9, 8, v9")
o("  v_lshl_add_u32 v9, v3, 2, v9")
o("  s_lshl_b32 s26, s6, 7")
o("  v_add_u32 v9, s26, v9")
for q in range(4):
    o(f"  s_mov_b32 s{64+q}, {(8*q)*256}")
o("  v_mov_b32 v12, 0x71800000")
o("  v_mov_b32 v11, 0xf1800000")
o("  s_waitcnt vmcnt(4)")
for idx, off in enumerate((0, 8192)):
    o(f"  ds_write_b128 v10, v[{WT+4*idx}:{WT+4*idx+3}] offset:{off}")
o("  s_waitcnt lgkmcnt(0)")
o("  s_barrier")
for m in range(2):
    for ks in range(4):
        for h in range(2):
            f = WF+m*16+ks*4+2*h
            o(f"  ds_read_b64_tr_b16 v[{f}:{f+1}], v5 offset:{m*8192 + ks*2048 + h*512}")
o("  s_waitcnt vmcnt(0) lgkmcnt(0)")
stamp(1)
for m in range(2):
    for ks in range(4):
        a = XF+ks*4
        b = WF+m*16+ks*4
        c = AC+m*16
        o(f"  v_mfma_f32_32x32x16_bf16 v[{c}:{c+15}], v[{a}:{a+3}], v[{b}:{b+3}], v[{c}:{c+15}]")
o("  s_nop 15")
o("  s_nop 3")
stamp(2)
for i in range(16):
    a1 = AC+i
    a2 = AC+16+i
    o(f"  v_mul_f32 v13, {NLOG2E:#x}, v{a1}")
    o(f"  v_med3_f32 v13, v13, v11, v12")
    o(f"  v_cvt_pk_bf16_f32 v13, v13, v13")
    o(f"  v_and_b32 v13, 0xffff, v13")
    o(f"  v_and_b32 v14, 0x7fffffff, v{a2}")
    o(f"  v_and_b32 v15, 0x80000000, v{a2}")
    o(f"  v_sub_u32 v14, v14, v13")
    o(f"  v_add_u32 v14, 0x8000, v14")
    o(f"  v_max_i32 v14, 0, v14")
    o(f"  v_min_i32 v14, 0x7f7fffff, v14")
    o(f"  v_and_b32 v14, 0xffff0000, v14")
    o(f"  v_or3_b32 v{a1}, v14, v15, v13")
    o(f"  buffer_store_dword v{a1}, v9, s[40:43], s{64+(i>>2)} offen offset:{(i&3)*256}")
if DBG:
    o("  s_waitcnt vmcnt(0)")
    stamp(3)
    o("  s_waitcnt lgkmcnt(0)")
    o("  s_cmp_lg_u32 s2, {}".format(PW+7))
    o("  s_cbranch_scc1 K1_END")
    o("  v_cmp_eq_u32 vcc, 0, v0")
    o("  s_and_saveexec_b64 s[70:71], vcc")
    o("  s_cbranch_execz K1_END")
    o("  s_load_dwordx2 s[72:73], s[0:1], 64")
    o("  s_waitcnt lgkmcnt(0)")
    srd(76, 72, 73, 256)
    o("  v_mov_b32 v1, 64")
    for i in range(1, 3+1):
        o(f"  s_sub_u32 s73, s{80+2*i}, s80")
        o(f"  v_mov_b32 v2, s73")
        o(f"  buffer_store_dword v2, v1, s[76:79], 0 offen offset:{4*i}")
o("K1_END:")
o("  s_endpgm")

L_HIST = 0
L_GOFF = 256
L_MISC = 512
L_HN = 576
L_HEAD = 1024
L_ACC = L_HEAD + 16*256
L_A = L_ACC + BN*256
L_U = L_A + 64*256
L_SORT = L_U + 64*256
L_X = 150 * 1024
L_W = L_HEAD
NIT = KSEG // 4
o(".globl mpnn_k2_kernel")
o(".p2align 8")
o(".type mpnn_k2_kernel,@function")
o("mpnn_k2_kernel:")
o(f"  s_cmp_ge_u32 s2, {NB}")
o("  s_cbranch_scc1 K2_END")
stamp(0)
o("  s_load_dwordx4 s[8:11], s[0:1], 48")
o("  s_load_dwordx2 s[12:13], s[0:1], 64")
o("  s_load_dwordx2 s[14:15], s[0:1], 32")
o("  s_load_dwordx2 s[16:17], s[0:1], 0")
o("  s_load_dwordx2 s[24:25], s[0:1], 72")
o("  v_lshrrev_b32 v1, 6, v0")
o("  v_and_b32 v2, 63, v0")
o("  v_readfirstlane_b32 s5, v1")
o("  v_lshlrev_b32 v3, 4, v0")
o("  v_lshrrev_b32 v4, 3, v0")
o("  v_and_b32 v5, 7, v0")
o("  v_lshlrev_b32 v5, 1, v5")
o("  v_and_b32 v6, 15, v2")
o("  v_lshlrev_b32 v6, 4, v6")
o("  v_lshlrev_b32 v7, 2, v4")
o("  s_and_b32 s7, s2, 7")
o("  s_lshl_b32 s7, s7, 5")
o("  s_lshr_b32 s58, s2, 3")
o("  s_or_b32 s7, s7, s58")
o("  s_lshl_b32 s7, s7, 10")
o(f"  s_mul_i32 s6, s2, {BN*256}")
o("  s_waitcnt lgkmcnt(0)")
srd(48, 8, 9, 129*128)
srd(44, 14, 15, 8192)
srd(40, 16, 17, N*128)
srd_off(28, 24, 25, OFFT_OFF, 257*1024)
o("  buffer_load_dword v8, v7, s[28:31], s7 offen")
o("  buffer_load_dword v9, v7, s[28:31], s7 offen offset:1024")
o("  buffer_load_dword v24, v7, s[28:31], s7 offen offset:512")
o("  buffer_load_dword v25, v7, s[28:31], s7 offen offset:1536")
srd_off(32, 24, 25, REC_OFF, PW*CH*8)
srd_off(36, 24, 25, T_OFF, ROWS)
o("  s_or_b32 s37, s37, 0x01000000")
srd(52, 10, 11, N*128)
o("  v_mov_b32 v120, 0")
o("  v_mov_b32 v121, 0")
o("  v_mov_b32 v122, 0")
o("  v_mov_b32 v123, 0")
o("  s_cmp_lg_u32 s5, 0")
o("  s_cbranch_scc1 K2_Z2")
o(f"  ds_write_b128 v3, v[120:123] offset:0")
o("K2_Z2:")
o("  v_lshrrev_b32 v10, 4, v2")
o("  v_and_b32 v11, 1, v10")
o("  v_lshlrev_b32 v11, 3, v11")
o("  v_lshrrev_b32 v10, 1, v10")
o("  v_lshl_add_u32 v11, v10, 2, v11")
o("  v_add_u32 v36, v11, v6")
o("  v_mov_b32 v27, 1")
o("  v_mov_b32 v32, 0x3f80")
o("  s_mov_b32 s60, 0")
o(f"  v_mov_b32 v11, {CH*8}")
o("  v_add_u32 v10, 128, v4")
o("  s_waitcnt vmcnt(0)")
stamp(1)
o("  v_sub_u32 v9, v9, v8")
o("  v_sub_u32 v25, v25, v24")
o(f"  v_cmp_gt_u32 vcc, {PW}, v10")
o("  v_add_u32 v8, v8, v5")
o("  v_add_u32 v24, v24, v5")
o("  v_cndmask_b32 v25, 0, v25, vcc")
o(f"  v_min_u32 v9, {CH}, v9")
o(f"  v_min_u32 v25, {CH}, v25")
o("  v_lshlrev_b32 v8, 3, v8")
o("  v_lshlrev_b32 v24, 3, v24")
o("  v_mad_u32_u24 v8, v4, v11, v8")
o("  v_mad_u32_u24 v24, v10, v11, v24")
o("  v_max_u32 v23, v9, v25")
o("  v_sub_u32 v26, v9, v5")
o("  v_sub_u32 v25, v25, v5")
RL = 40
RK = 64
REM = (26, 25)
ADR = (8, 24)
NI = KSEG // 16
o("K2_ROUND:")
for p in range(2):
    for it in range(NI):
        q = p*NI + it
        o(f"  v_cmpx_lt_i32 vcc, {16*it}, v{REM[p]}")
        o(f"  s_cbranch_execz K2_LD_DONE{p}")
        o(f"  buffer_load_dwordx4 v[{RL+4*q}:{RL+4*q+3}], v{ADR[p]}, s[32:35], 0 offen offset:{128*it}")
    o(f"K2_LD_DONE{p}:")
    o("  s_mov_b64 exec, -1")
o("  s_cmp_lg_u32 s60, 0")
o("  s_cbranch_scc1 K2_SETUP_SKIP")
o("  v_lshrrev_b32 v10, 1, v6")
o(f"  v_add_u32 v10, {128*128}, v10")
o("  buffer_load_dwordx2 v[20:21], v10, s[48:51], 0 offen")
o("  v_and_b32 v10, 0x1ff0, v3")
o("  s_cmp_ge_u32 s5, 8")
o("  s_cbranch_scc1 K2_W1")
o("  buffer_load_dwordx4 v[12:15], v10, s[48:51], 0 offen")
o(f"  s_mul_i32 s59, s2, {BN*128}")
o("  buffer_load_dwordx4 v[88:91], v3, s[40:43], s59 offen")
o("  s_waitcnt lgkmcnt(0)")
o("  s_barrier")
stamp(7)
o("  s_waitcnt vmcnt(3)")
o("  s_branch K2_W2")
o("K2_W1:")
o("  buffer_load_dwordx4 v[12:15], v10, s[44:47], 0 offen")
o("  s_waitcnt lgkmcnt(0)")
o("  s_barrier")
stamp(7)
o("  s_waitcnt vmcnt(2)")
o("K2_W2:")
o(f"  v_mov_b32 v11, {L_MISC}")
o("  ds_max_u32 v11, v23")
o("  s_branch K2_SETUP_DONE")
o("K2_SETUP_SKIP:")
o("  s_waitcnt lgkmcnt(0)")
o("  s_barrier")
o("  s_waitcnt vmcnt(0)")
o("K2_SETUP_DONE:")
stamp(2)
def rec_loop(tag, body):
    for p in range(2):
        for it in range(NI):
            for h in range(2):
                q = p*NI + it
                o(f"  v_cmpx_lt_i32 vcc, {16*it+h}, v{REM[p]}")
                o(f"  s_cbranch_execz K2_{tag}_DONE{p}")
                body(RL+4*q+2*h, 2*q+h)
        o(f"K2_{tag}_DONE{p}:")
        o("  s_mov_b64 exec, -1")
def b_at(r, i):
    o(f"  v_lshlrev_b32 v{r+1}, 2, v{r+1}")
    o(f"  ds_add_rtn_u32 v{RK+i}, v{r+1}, v27 offset:{L_HIST}")
rec_loop("AT", b_at)
o("  s_cmp_lg_u32 s60, 0")
o("  s_cbranch_scc1 K2_WST_SKIP")
o("  s_waitcnt vmcnt(0)")
o(f"  ds_write_b128 v3, v[12:15] offset:{L_W}")
o("  s_cmp_ge_u32 s5, 8")
o("  s_cbranch_scc1 K2_XST")
o("  v_lshrrev_b32 v10, 3, v0")
o("  v_lshl_add_u32 v10, v10, 4, v3")
o(f"  v_add_u32 v10, {L_X}, v10")
o("  ds_write_b128 v10, v[88:91]")
o("K2_XST:")
o("  v_lshlrev_b32 v28, 16, v20")
o("  v_and_b32 v29, 0xffff0000, v20")
o("  v_lshlrev_b32 v30, 16, v21")
o("  v_and_b32 v31, 0xffff0000, v21")
for j in range(4):
    o(f"  v_mul_f32 v{28+j}, {NLOG2E:#x}, v{28+j}")
o("K2_WST_SKIP:")
o("  s_waitcnt lgkmcnt(0)")
o("  s_barrier")
stamp(8)
o("  s_cmp_lg_u32 s60, 0")
o("  s_cbranch_scc1 K2_PF_SKIP")
o("  s_lshr_b32 s58, s2, 3")
o(f"  s_mul_i32 s58, s58, {392*256}")
for i in range(7 if EXP == "prefetch" else 0):
    o(f"  buffer_load_dwordx4 v[104:107], v3, s[36:39], s58 offen")
    o(f"  s_add_u32 s58, s58, 16384")

o("K2_PF_SKIP:")
o("  v_lshlrev_b32 v11, 2, v2")
o(f"  ds_read_b32 v37, v11 offset:{L_HIST}")
o(f"  v_cmp_gt_u32 s[56:57], {BN}, v2")
o("  s_waitcnt lgkmcnt(0)")
o("  v_add_u32 v34, 3, v37")
o("  v_and_b32 v34, -4, v34")
o("  v_max_u32 v34, 4, v34")
o("  v_cndmask_b32 v34, 0, v34, s[56:57]")
o("  v_mov_b32 v35, v34")
wave_scan(35)
o("  v_readlane_b32 s61, v35, 63")
o("  v_sub_u32 v35, v35, v34")
o("  s_add_u32 s62, s61, 15")
o("  s_and_b32 s62, s62, -16")
o("  v_mov_b32 v33, s62")
o("  s_nop 1")
o("  v_cndmask_b32 v33, v33, v35, s[56:57]")
o("  s_cmp_lg_u32 s5, 0")
o("  s_cbranch_scc1 K2_PAD_DONE")
o(f"  v_mov_b32 v38, {N}")
o("  v_mov_b32 v39, 0")
o("  v_add_u32 v10, v35, v37")
o("  v_lshlrev_b32 v10, 3, v10")
o("  v_sub_u32 v34, v34, v37")
for j in range(4):
    o(f"  v_cmpx_lt_u32 vcc, {j}, v34")
    o(f"  ds_write_b64 v10, v[38:39] offset:{L_SORT+8*j}")
o("  s_mov_b64 exec, -1")
o("  v_add_u32 v10, s61, v2")
o("  v_lshlrev_b32 v10, 3, v10")
o("  v_cmpx_gt_u32 vcc, 16, v2")
o(f"  ds_write_b64 v10, v[38:39] offset:{L_SORT}")
o("  s_mov_b64 exec, -1")
o("K2_PAD_DONE:")
for p in range(2):
    for it in range(NI):
        for h in range(2):
            q = p*NI + it
            r = RL+4*q+2*h
            o(f"  v_cmp_lt_i32 vcc, {16*it+h}, v{REM[p]}")
            o(f"  s_cbranch_vccz K2_SC1_DONE{p}")
            o(f"  ds_bpermute_b32 v{76+2*q+h}, v{r+1}, v33")
    o(f"K2_SC1_DONE{p}:")
o("  s_waitcnt lgkmcnt(0)")
def b_wr(r, i):
    o(f"  v_add_u32 v11, v{76+i}, v{RK+i}")
    o(f"  v_lshlrev_b32 v11, 3, v11")
    o(f"  v_and_b32 v{r+1}, 0xffff0000, v{r}")
    o(f"  v_and_b32 v{r}, 0x3fff, v{r}")
    o(f"  ds_write_b64 v11, v[{r}:{r+1}] offset:{L_SORT}")
rec_loop("SC2", b_wr)
stamp(9)
o("  v_readlane_b32 s62, v33, 49")
o("  s_lshr_b32 s63, s62, 4")
o("  s_mul_i32 s64, s63, s5")
o("  s_lshr_b32 s64, s64, 4")
o("  s_add_u32 s65, s5, 1")
o("  s_mul_i32 s65, s63, s65")
o("  s_lshr_b32 s65, s65, 4")
o("  s_lshl_b32 s66, s64, 4")
o("  s_lshl_b32 s67, s65, 4")
o(f"  v_cmp_gt_u32 s[56:57], {BN}, v2")
o("  v_cmp_ge_u32 vcc, s66, v33")
o("  s_and_b64 vcc, vcc, s[56:57]")
o("  s_bcnt1_i32_b64 s68, vcc")
o("  s_sub_u32 s68, s68, 1")
o("  s_add_u32 s69, s68, 1")
o("  v_readlane_b32 s70, v33, s69")
o("  v_readlane_b32 s72, v33, s68")
o("  s_cmp_lg_u32 s72, s66")
o("  s_cselect_b32 s73, 1, 0")
o("  s_cmp_ge_u32 s64, s65")
o("  s_cselect_b32 s73, 0, s73")
o("  s_cmp_lg_u32 s73, 0")
o("  s_cselect_b32 s74, s68, -1")
o("  v_mov_b32 v11, s74")
o("  s_lshl_b32 s74, s5, 2")
o("  v_mov_b32 v10, s74")
o(f"  ds_write_b32 v10, v11 offset:{L_HN}")
o("  s_waitcnt lgkmcnt(0)")
o("  s_barrier")
stamp(3)
if DBG:
    pass
AV = 40
AC2 = 44
RB = 48
EBL = [12,13,14,15, 20,21,22,23, 4,5,9,10]
WB = 72
TT = 120
NBUF = int(os.environ.get("NBUF","2"))
VRA = 34
VAA = 35
VRB = 37
o("  v_lshrrev_b32 v11, 4, v2")
o("  v_lshlrev_b32 v11, 3, v11")
o("  s_lshl_b32 s71, s66, 3")
o(f"  v_add_u32 v{VRA}, s71, v11")
o("  v_mov_b32 v38, 1.0")
o("  v_mov_b32 v39, 1.0")
for b in range(NBUF):
    for g in range(4):
        o(f"  v_mov_b32 v{RB+b*8+g*2+1}, v6")
def rec_read(bf):
    for g in range(4):
        o(f"  ds_read_b32 v{RB+bf*8+g*2}, v{VRA} offset:{L_SORT+32*g}")
        o(f"  ds_read_b32 v{EBL[bf*4+g]}, v{VRA} offset:{L_SORT+32*g+4}")
    o(f"  v_add_u32 v{VRA}, 128, v{VRA}")
def issue(bf, ahead=None):
    if ahead is None:
        ahead = NBUF-1
    o(f"  s_add_u32 s78, s66, {16*ahead}")
    o("  s_cmp_lt_u32 s78, s67")
    o(f"  s_cselect_b32 s38, {ROWS}, 0")
    for g in range(4):
        r = RB+bf*8+g*2
        if EXP == "samerow":
            o(f"  v_mov_b32 v{r}, 0")
        if EXP != "noload":
            o(f"  buffer_load_dwordx4 v[{WB+bf*16+g*4}:{WB+bf*16+g*4+3}], v[{r}:{r+1}], s[36:39], 0 idxen offen")
        o(f"  ds_read_b32 v{r}, v{VRB} offset:{L_SORT+32*g}")
    o(f"  v_add_u32 v{VRB}, 128, v{VRB}")
uid = [0]
def compute(bf):
    for g in range(4):
        e = EBL[bf*4+g]
        ep, es = e & ~1, e & 1
        w = WB+bf*16+g*4
        t = TT + (g & 1)*4
        o(f"  s_waitcnt vmcnt({4*(NBUF-1) + 3 - g})")
        for j in (0, 2):
            o(f"  v_pk_fma_f32 v[{t+j}:{t+j+1}], v[{ep}:{ep+1}], v[{28+j}:{29+j}], v[{AV+j}:{AV+j+1}] op_sel:[{es},0,0] op_sel_hi:[{es},1,1]")
        o(f"  ds_read_b32 v{e}, v{VRA} offset:{L_SORT+32*g+4}")
        for j in range(4):
            o(f"  v_dot2_f32_bf16 v{t+j}, v{w+j}, v32, v{t+j}")
        if EXP != "nocompute":
            for j in range(4):
                o(f"  v_exp_f32 v{t+j}, v{t+j}")
            o("  s_nop 0")
            for j in (0, 2):
                o(f"  v_pk_add_f32 v[{t+j}:{t+j+1}], v[{t+j}:{t+j+1}], v[38:39]")
            for j in range(4):
                o(f"  v_rcp_f32 v{t+j}, v{t+j}")
        o("  s_add_u32 s66, s66, 4")
        for j in (0, 2):
            o(f"  v_pk_fma_f32 v[{AC2+j}:{AC2+j+1}], v[{t+j}:{t+j+1}], v[{w+j}:{w+j+1}], v[{AC2+j}:{AC2+j+1}]")
        uid[0] += 1
        u = uid[0]
        o("  s_cmp_lg_u32 s66, s70")
        o(f"  s_cbranch_scc1 K2_NF{u}")
        o("  s_getpc_b64 s[76:77]")
        o("  s_add_u32 s76, s76, 12")
        o("  s_addc_u32 s77, s77, 0")
        o("  s_branch K2_FLUSH")
        o(f"K2_NF{u}:")
    o(f"  v_add_u32 v{VRA}, 128, v{VRA}")
for b in range(NBUF):
    rec_read(b)
o(f"  v_mov_b32 v{VRB}, v{VRA}")
o("  s_waitcnt lgkmcnt(0)")
for b in range(NBUF-1):
    issue(b, b)
o("  s_cmp_lg_u32 s60, 0")
o("  s_cbranch_scc1 K2_MM_SKIP")
o("  s_cmp_ge_u32 s5, 8")
o("  s_cbranch_scc1 K2_MM_DONE")
ACM = 104
o("  v_lshrrev_b32 v1, 5, v2")
o("  v_lshlrev_b32 v7, 10, v1")
o("  v_bfe_u32 v11, v2, 2, 2")
o("  v_lshl_add_u32 v7, v11, 7, v7")
o("  v_bfe_u32 v11, v2, 4, 1")
o("  v_lshl_add_u32 v7, v11, 5, v7")
o("  v_and_b32 v11, 3, v2")
o("  v_lshl_add_u32 v7, v11, 3, v7")
o("  s_and_b32 s58, s5, 1")
o("  s_bfe_u32 s59, s5, 0x10001")
o("  s_lshl_b32 s78, s58, 6")
o("  s_lshl_b32 s79, s59, 13")
o("  s_add_u32 s78, s78, s79")
o("  v_add_u32 v7, s78, v7")
o("  s_lshr_b32 s78, s5, 2")
o(f"  s_mul_i32 s78, s78, {32*144}")
o(f"  s_add_u32 s78, s78, {L_X}")
o("  v_and_b32 v11, 31, v2")
o("  v_mul_u32_u24 v11, 144, v11")
o("  v_lshl_add_u32 v11, v1, 4, v11")
o("  v_add_u32 v11, s78, v11")
for i in range(16):
    o(f"  v_mov_b32 v{ACM+i}, 0")
for half in range(2):
    for k2 in range(2):
        ks = half*2 + k2
        for h in range(2):
            f = 40+k2*4+2*h
            o(f"  ds_read_b64_tr_b16 v[{f}:{f+1}], v7 offset:{L_W + ks*2048 + h*512}")
        o(f"  ds_read_b128 v[{120+k2*4}:{123+k2*4}], v11 offset:{ks*32}")
    o("  s_waitcnt lgkmcnt(0)")
    for k2 in range(2):
        o(f"  v_mfma_f32_32x32x16_bf16 v[{ACM}:{ACM+15}], v[{120+k2*4}:{123+k2*4}], v[{40+k2*4}:{43+k2*4}], v[{ACM}:{ACM+15}]")
    o("  s_nop 7")
o("  s_lshr_b32 s78, s5, 2")
o("  s_lshl_b32 s78, s78, 13")
o("  s_lshl_b32 s79, s58, 7")
o("  s_add_u32 s78, s78, s79")
o("  s_lshl_b32 s79, s59, 14")
o("  s_add_u32 s78, s78, s79")
o("  v_lshlrev_b32 v7, 10, v1")
o("  v_and_b32 v11, 31, v2")
o("  v_lshl_add_u32 v7, v11, 2, v7")
o("  v_add_u32 v7, s78, v7")
o(f"  s_cmp_eq_u32 s59, 0")
o(f"  s_cselect_b32 s79, {NLOG2E:#x}, 1.0")
o("  v_mov_b32 v11, s79")
o("  s_nop 7")
for i in range(16):
    o(f"  v_mul_f32 v{ACM+i}, v{ACM+i}, v11")
    o(f"  ds_write_b32 v7, v{ACM+i} offset:{L_A + ((i&3) + 8*(i>>2))*256}")
o("K2_MM_DONE:")
o("  s_waitcnt lgkmcnt(0)")
o("  s_barrier")
o("K2_MM_SKIP:")
o("  s_cmp_ge_u32 s64, s65")
o("  s_cbranch_scc1 K2_NOFINAL")
o("  s_lshl_b32 s71, s68, 8")
o(f"  v_add_u32 v{VAA}, s71, v6")
o(f"  ds_read_b128 v[{AV}:{AV+3}], v{VAA} offset:{L_A}")
for j in range(4):
    o(f"  v_mov_b32 v{AC2+j}, 0")
o("  s_setprio 3")
pid = [0]
def prio_update():
    if not PRIO:
        return
    pid[0] += 1
    u = pid[0]
    o("  s_sub_u32 s78, s67, s66")
    o(f"  s_cmp_gt_u32 s78, {16*P3}")
    o(f"  s_cbranch_scc1 K2_PD{u}")
    o(f"  s_cmp_gt_u32 s78, {16*P2}")
    o(f"  s_cbranch_scc1 K2_PA{u}")
    o(f"  s_cmp_gt_u32 s78, {16*P1}")
    o(f"  s_cbranch_scc1 K2_PB{u}")
    o("  s_setprio 0")
    o(f"  s_branch K2_PD{u}")
    o(f"K2_PA{u}:")
    o("  s_setprio 2")
    o(f"  s_branch K2_PD{u}")
    o(f"K2_PB{u}:")
    o("  s_setprio 1")
    o(f"K2_PD{u}:")
o("K2_LOOP:")
for b in range(NBUF):
    o("  s_waitcnt lgkmcnt(0)")
    issue((b + NBUF - 1) % NBUF)
    compute(b)
    prio_update()
    if b < NBUF-1:
        o("  s_cmp_ge_u32 s66, s67")
        o("  s_cbranch_scc1 K2_LOOP_EXIT")
o("  s_cmp_lt_u32 s66, s67")
o("  s_cbranch_scc1 K2_LOOP")
o("K2_LOOP_EXIT:")
o("  s_setprio 0")
o("  v_readlane_b32 s72, v33, s68")
o("  s_cmp_ge_u32 s72, s67")
o("  s_cbranch_scc1 K2_NOFINAL")
o("  s_getpc_b64 s[76:77]")
o("  s_add_u32 s76, s76, 12")
o("  s_addc_u32 s77, s77, 0")
o("  s_branch K2_FLUSH")
o("K2_NOFINAL:")
o("  s_waitcnt vmcnt(0) lgkmcnt(0)")
o("K2_MAIN_DONE:")
stamp(4)
o(f"  v_mov_b32 v11, {L_MISC}")
o("  ds_read_b32 v34, v11")
o("  s_barrier")
o("  v_lshlrev_b32 v10, 2, v2")
o(f"  ds_read_b32 v35, v10 offset:{L_HN}")
o(f"  ds_read_b32 v11, v10 offset:{L_HN-4}")
o("  s_lshl_b32 s71, s5, 8")
o("  v_add_u32 v20, s71, v36")
o(f"  ds_read_b32 v21, v20 offset:{L_HEAD}")
o("  s_waitcnt lgkmcnt(0)")
o("  v_readfirstlane_b32 s61, v34")
o(f"  s_min_u32 s61, s61, {CH}")
o("  v_cmp_eq_u32 vcc, v35, v11")
o("  v_cmp_ne_u32 s[56:57], -1, v35")
o("  s_and_b64 vcc, vcc, s[56:57]")
o("  s_and_b32 s72, vcc_lo, 0xfffe")
o("  s_cmp_lg_u32 s72, 0")
o("  s_cbranch_scc1 K2_CB_SLOW")
o("  s_cmp_lt_u32 s63, 16")
o("  s_cbranch_scc1 K2_CB_SLOW")
o("  v_readlane_b32 s72, v35, s5")
o("  s_cmp_eq_u32 s72, -1")
o("  s_cbranch_scc1 K2_CB_F1")
o("  s_lshl_b32 s72, s72, 8")
o("  v_add_u32 v20, s72, v36")
o(f"  ds_read_b32 v22, v20 offset:{L_ACC}")
o("  s_waitcnt lgkmcnt(0)")
o("  v_add_f32 v22, v22, v21")
o(f"  ds_write_b32 v20, v22 offset:{L_ACC}")
o("  s_waitcnt lgkmcnt(0)")
o("K2_CB_F1:")
o("  s_barrier")
o(f"  ds_read_b128 v[12:15], v3 offset:{L_ACC}")
o(f"  ds_read_b128 v[16:19], v3 offset:{L_U}")
o("  s_waitcnt lgkmcnt(0)")
o("  s_branch K2_CB_DONE")
o("K2_CB_SLOW:")
o(f"  ds_read_b128 v[12:15], v3 offset:{L_ACC}")
o(f"  ds_read_b128 v[16:19], v3 offset:{L_U}")
o("  v_lshrrev_b32 v10, 4, v0")
o("  s_waitcnt lgkmcnt(0)")
for w in range(16):
    o(f"  v_readlane_b32 s72, v35, {w}")
    o("  s_nop 1")
    o("  v_cmpx_eq_u32 vcc, s72, v10")
    o(f"  s_cbranch_execz K2_CB{w}")
    o(f"  ds_read_b128 v[20:23], v6 offset:{L_HEAD+256*w}")
    o("  s_waitcnt lgkmcnt(0)")
    for j in range(4):
        o(f"  v_add_f32 v{12+j}, v{12+j}, v{20+j}")
    o(f"K2_CB{w}:")
    o("  s_mov_b64 exec, -1")
o("K2_CB_DONE:")
o(f"  s_add_u32 s60, s60, {KSEG}")
o("  s_cmp_ge_u32 s60, s61")
o("  s_cbranch_scc1 K2_FINAL")
o("  v_cmp_gt_u32 vcc, 784, v0")
o("  s_and_saveexec_b64 s[56:57], vcc")
o("  s_cbranch_execz K2_NR0")
o(f"  ds_write_b128 v3, v[12:15] offset:{L_ACC}")
o("K2_NR0:")
o("  s_mov_b64 exec, s[56:57]")
o("  s_cmp_lg_u32 s5, 0")
o("  s_cbranch_scc1 K2_NR1")
o("  v_lshlrev_b32 v11, 2, v2")
o("  v_mov_b32 v34, 0")
o(f"  ds_write_b32 v11, v34 offset:{L_HIST}")
o("K2_NR1:")
o(f"  v_subrev_u32 v26, {KSEG}, v26")
o(f"  v_subrev_u32 v25, {KSEG}, v25")
o(f"  v_add_u32 v8, {KSEG*8}, v8")
o(f"  v_add_u32 v24, {KSEG*8}, v24")
o("  s_branch K2_ROUND")
o("K2_FINAL:")
stamp(5)
if DBG:
    pass
o("  v_cmp_gt_u32 vcc, 784, v0")
o("  s_and_saveexec_b64 s[56:57], vcc")
o("  s_cbranch_execz K2_FIN2")
o("  v_lshlrev_b32 v11, 3, v0")
o(f"  s_mul_i32 s6, s2, {BN*128}")
for j in range(4):
    o(f"  v_add_f32 v{12+j}, v{12+j}, v{16+j}")
for j in range(4):
    o(f"  v_mul_f32 v{20+j}, {NLOG2E:#x}, v{12+j}")
for j in range(4):
    o(f"  v_exp_f32 v{20+j}, v{20+j}")
for j in range(4):
    o(f"  v_add_f32 v{20+j}, 1.0, v{20+j}")
for j in range(4):
    o(f"  v_rcp_f32 v{20+j}, v{20+j}")
o("  s_nop 0")
for j in range(4):
    o(f"  v_mul_f32 v{12+j}, v{12+j}, v{20+j}")
o("  v_cvt_pk_bf16_f32 v12, v12, v13")
o("  v_cvt_pk_bf16_f32 v13, v14, v15")
o("  buffer_store_dwordx2 v[12:13], v11, s[52:55], s6 offen")
o("K2_FIN2:")
o("  s_mov_b64 exec, -1")
if DBG:
    stamp(6)
    o("  s_waitcnt lgkmcnt(0)")
    o("  s_cmp_lg_u32 s2, 5")
    o("  s_cbranch_scc1 K2_END")
    o("  s_lshl_b32 s72, s5, 4")
    srd(76, 12, 13, 256)
    o("  v_mov_b32 v1, s72")
    for n, i in enumerate(STAMPS):
        o(f"  s_sub_u32 s73, s{80+2*i}, s80")
        o(f"  v_mov_b32 v2, s73")
        o(f"  buffer_store_dword v2, v1, s[76:79], 0 offen offset:{4*n}")
o("K2_END:")
o("  s_endpgm")
o("K2_FLUSH:")
o("  s_nop 1")
o(f"  v_permlane32_swap_b32 v{AC2}, v{AC2+1}")
o(f"  v_permlane32_swap_b32 v{AC2+2}, v{AC2+3}")
o("  s_lshl_b32 s71, s68, 8")
o(f"  v_add_u32 v{VAA}, s71, v6")
o(f"  v_add_f32 v{AC2}, v{AC2}, v{AC2+1}")
o(f"  v_add_f32 v{AC2+2}, v{AC2+2}, v{AC2+3}")
o(f"  ds_read_b128 v[{AV}:{AV+3}], v{VAA} offset:{L_A+256}")
o(f"  v_add_u32 v{VAA}, s71, v36")
o(f"  v_permlane16_swap_b32 v{AC2}, v{AC2+2}")
o("  s_cmp_lg_u32 s73, 0")
o("  s_cbranch_scc1 K2_FL_HEAD")
o(f"  v_add_f32 v{AC2}, v{AC2}, v{AC2+2}")
o("  s_cmp_eq_u32 s60, 0")
o("  s_cbranch_scc1 K2_FL_W")
o(f"  ds_read_b32 v{AC2+1}, v{VAA} offset:{L_ACC}")
o("  s_waitcnt lgkmcnt(0)")
o(f"  v_add_f32 v{AC2}, v{AC2}, v{AC2+1}")
o("K2_FL_W:")
o(f"  ds_write_b32 v{VAA}, v{AC2} offset:{L_ACC}")
o("  s_branch K2_FL_C")
o("K2_FL_HEAD:")
o(f"  v_add_f32 v{AC2}, v{AC2}, v{AC2+2}")
o("  s_lshl_b32 s71, s5, 8")
o(f"  v_add_u32 v{VAA}, s71, v36")
o(f"  ds_write_b32 v{VAA}, v{AC2} offset:{L_HEAD}")
o("  s_mov_b32 s73, 0")
o("K2_FL_C:")
o("  s_add_u32 s68, s68, 1")
o("  s_add_u32 s69, s68, 1")
o("  v_readlane_b32 s70, v33, s69")
o("  s_waitcnt lgkmcnt(0)")
for j in range(4):
    o(f"  v_mov_b32 v{AC2+j}, 0")
o("  s_setpc_b64 s[76:77]")

o('.section .rodata,"a"')
for name, vg in (("mpnn_k1_kernel", 112), ("mpnn_k2_kernel", 128)):
    o(".p2align 6")
    o(f".amdhsa_kernel {name}")
    o(f"  .amdhsa_next_free_vgpr {vg}")
    o("  .amdhsa_next_free_sgpr 102")
    o(f"  .amdhsa_accum_offset {vg}")
    o("  .amdhsa_group_segment_fixed_size 0")
    o("  .amdhsa_kernarg_size 80")
    o("  .amdhsa_user_sgpr_count 2")
    o("  .amdhsa_user_sgpr_kernarg_segment_ptr 1")
    o("  .amdhsa_system_sgpr_workgroup_id_x 1")
    o(".end_amdhsa_kernel")

import re
_i = out.index("mpnn_k2_kernel:")
for _k in range(_i):
    if out[_k].lstrip().startswith("buffer_store_dword"):
        out[_k] += " sc1"
open(sys.argv[1] if len(sys.argv) > 1 else "standalone__edge_featured_mpnn_egc__graph.s", "w").write("\n".join(out) + "\n")
```

```python
import sys

N = 12500
E = 800000
NB = 256
BN = 49
PW = 250
CH = 3200
GW = 98
ROWS = 12544
KSEG = 48
T_OFF = 0
A_OFF = 4 << 20
U_OFF = 8 << 20
REC_OFF = 12 << 20
OFFT_OFF = 20 << 20
NLOG2E = 0xbfb8aa3b

import os
DBG = int(os.environ.get("DBG","0"))
EXP = os.environ.get("EXP","")
PRIO = int(os.environ.get("PRIO","1"))
STAMPS = [int(x) for x in os.environ.get("STAMPS","2,3,4,5").split(",")]
P1, P2, P3 = [int(x) for x in os.environ.get("PTH","1,3,6").split(",")]
out = []
def stamp(i):
    if DBG:
        o(f"  s_memtime s[{80+2*i}:{81+2*i}]")
def o(s=""):
    out.append(s)

def srd(d, lo, hi, size):
    o(f"  s_mov_b32 s{d}, s{lo}")
    o(f"  s_and_b32 s{d+1}, s{hi}, 0xffff")
    o(f"  s_mov_b32 s{d+2}, {size}")
    o(f"  s_mov_b32 s{d+3}, 0x00020000")

def srd_off(d, lo, hi, off, size):
    o(f"  s_add_u32 s{d}, s{lo}, {off}")
    o(f"  s_addc_u32 s{d+1}, s{hi}, 0")
    o(f"  s_and_b32 s{d+1}, s{d+1}, 0xffff")
    o(f"  s_mov_b32 s{d+2}, {size}")
    o(f"  s_mov_b32 s{d+3}, 0x00020000")

def wave_scan(v, tmp=None):
    for sh in (1, 2, 4, 8):
        o("  s_nop 1")
        o(f"  v_add_u32_dpp v{v}, v{v}, v{v} row_shr:{sh} row_mask:0xf bank_mask:0xf")
    o("  s_nop 1")
    o(f"  v_add_u32_dpp v{v}, v{v}, v{v} row_bcast:15 row_mask:0xa bank_mask:0xf")
    o("  s_nop 1")
    o(f"  v_add_u32_dpp v{v}, v{v}, v{v} row_bcast:31 row_mask:0xc bank_mask:0xf")
    o("  s_nop 1")

K2_LDS = 160 * 1024
K1_LDS = 36 * 1024
o(f"; @launch kernel=mpnn_k1_kernel grid=({PW+GW},1,1) block=(512,1,1) lds={K1_LDS}")
o(f"; @launch kernel=mpnn_k2_kernel grid=({NB},1,1) block=(1024,1,1) lds={K2_LDS}")
o('.amdgcn_target "amdgcn-amd-amdhsa--gfx950"')
o(".text")

o(".globl mpnn_k1_kernel")
o(".p2align 8")
o(".type mpnn_k1_kernel,@function")
o("mpnn_k1_kernel:")
o(f"  s_cmp_ge_u32 s2, {PW+GW}")
o("  s_cbranch_scc1 K1_END")
stamp(0)
if os.environ.get("GFIRST"):
    o(f"  s_add_u32 s3, s2, {PW}")
    o(f"  s_sub_u32 s4, s2, {GW}")
    o(f"  s_cmp_lt_u32 s2, {GW}")
    o("  s_cselect_b32 s2, s3, s4")
o("  s_load_dwordx8 s[8:15], s[0:1], 0")
o("  s_load_dwordx8 s[16:23], s[0:1], 32")
o("  s_load_dwordx2 s[24:25], s[0:1], 72")
o(f"  s_cmp_ge_u32 s2, {PW}")
o("  s_cbranch_scc1 K1_GEMM")

HIST = 0
OFFL = 1024
STG = 2048
o("  v_lshlrev_b32 v1, 4, v0")
o("  v_lshlrev_b32 v2, 3, v0")
o("  v_lshlrev_b32 v3, 2, v0")
o("  v_mov_b32 v4, 0")
o(f"  ds_write_b32 v3, v4 offset:{HIST}")
o(f"  s_mul_i32 s50, s2, {CH*4}")
o(f"  s_mul_i32 s54, s2, {CH*2}")
o(f"  s_add_u32 s51, s50, 6400")
o(f"  s_add_u32 s55, s54, 3200")
o("  s_mov_b32 s58, 21400")
o("  s_mov_b32 s59, -49")
o("  v_cmp_gt_u32 vcc, 400, v0")
o("  s_waitcnt lgkmcnt(0)")
srd(28, 14, 15, E*4)
srd(32, 12, 13, E*4)
srd(36, 10, 11, E*2)
o("  s_and_saveexec_b64 s[62:63], vcc")
o("  s_cbranch_execz K1_P_L0")
vD, vS, vE = 8, 16, 24
for r in range(2):
    o(f"  buffer_load_dwordx4 v[{vD+4*r}:{vD+4*r+3}], v1, s[28:31], s{50+r} offen")
for r in range(2):
    o(f"  buffer_load_dwordx4 v[{vS+4*r}:{vS+4*r+3}], v1, s[32:35], s{50+r} offen")
for r in range(2):
    o(f"  buffer_load_dwordx2 v[{vE+2*r}:{vE+2*r+1}], v2, s[36:39], s{54+r} offen")
o("K1_P_L0:")
o(f"  s_mul_i32 s60, s2, {CH*8}")
o(f"  s_add_u32 s60, s60, {REC_OFF}")
o("  s_add_u32 s40, s24, s60")
o("  s_addc_u32 s41, s25, 0")
o("  s_and_b32 s41, s41, 0xffff")
o(f"  s_mov_b32 s42, {CH*8}")
o("  s_mov_b32 s43, 0x00020000")
srd_off(44, 24, 25, OFFT_OFF, 257*1024)
o("  v_mov_b32 v5, 1")
o("  s_mov_b32 s61, 0xffff0000")
o("  s_barrier")
vA, vR, vL = 28, 36, 44
o("  s_waitcnt vmcnt(4)")
stamp(1)
for k in range(8):
    o(f"  v_mul_u32_u24 v6, s58, v{vD+k}")
    o(f"  v_lshrrev_b32 v6, 20, v6")
    o(f"  v_mad_i32_i24 v{vL+2*k+1}, v6, s59, v{vD+k}")
    o(f"  v_and_b32 v7, 7, v6")
    o(f"  v_lshrrev_b32 v6, 3, v6")
    o(f"  v_lshl_or_b32 v6, v7, 5, v6")
    o(f"  v_lshlrev_b32 v{vA+k}, 2, v6")
    o(f"  ds_add_rtn_u32 v{vR+k}, v{vA+k}, v5 offset:{HIST}")
o("  s_waitcnt lgkmcnt(0)")
o("  s_barrier")
stamp(2)
o("  s_waitcnt vmcnt(0)")
for k in range(8):
    r, j = k >> 2, k & 3
    ereg = vE + 2*r + (j >> 1)
    if j & 1 == 0:
        o(f"  v_lshl_or_b32 v{vL+2*k}, v{ereg}, 16, v{vS+k}")
    else:
        o(f"  v_and_or_b32 v{vL+2*k}, v{ereg}, s61, v{vS+k}")
o("  s_mov_b64 exec, s[62:63]")
o("  v_cmp_gt_u32 vcc, 64, v0")
o("  s_and_saveexec_b64 s[64:65], vcc")
o("  s_cbranch_execz K1_P_SCANDONE")
o(f"  ds_read_b128 v[60:63], v1 offset:{HIST}")
o("  s_waitcnt lgkmcnt(0)")
o("  v_add_u32 v65, v60, v61")
o("  v_add_u32 v66, v65, v62")
o("  v_add_u32 v67, v66, v63")
o("  v_mov_b32 v68, v67")
wave_scan(68)
o("  v_sub_u32 v68, v68, v67")
o("  v_add_u32 v69, v68, v60")
o("  v_add_u32 v70, v68, v65")
o("  v_add_u32 v71, v68, v66")
o(f"  ds_write_b128 v1, v[68:71] offset:{OFFL}")
o("  v_lshlrev_b32 v64, 12, v0")
o("  s_lshl_b32 s66, s2, 2")
for j in range(4):
    o(f"  buffer_store_dword v{68+j}, v64, s[44:47], s66 offen offset:{j*1024}")
o(f"  v_mov_b32 v72, {CH}")
o(f"  v_mov_b32 v73, {256*1024}")
o("  buffer_store_dword v72, v73, s[44:47], s66 offen")
o("K1_P_SCANDONE:")
o("  s_mov_b64 exec, s[64:65]")
o("  v_cmp_gt_u32 vcc, 400, v0")
o("  s_and_saveexec_b64 s[62:63], vcc")
o("  s_waitcnt lgkmcnt(0)")
o("  s_barrier")
stamp(3)
for k in range(8):
    o(f"  ds_read_b32 v{vD+k}, v{vA+k} offset:{OFFL}")
o("  s_waitcnt lgkmcnt(0)")
for k in range(8):
    o(f"  v_add_u32 v6, v{vD+k}, v{vR+k}")
    o(f"  v_lshlrev_b32 v6, 3, v6")
    o(f"  ds_write_b64 v6, v[{vL+2*k}:{vL+2*k+1}] offset:{STG}")
o("  s_mov_b64 exec, s[62:63]")
o("  s_waitcnt lgkmcnt(0)")
o("  s_barrier")
stamp(4)
for i in range(4):
    o(f"  ds_read_b128 v[{8+4*i}:{8+4*i+3}], v1 offset:{STG+8192*i}")
o("  v_add_u32 v2, 0x2000, v1")
o("  v_add_u32 v3, 0x4000, v1")
o("  v_add_u32 v4, 0x6000, v1")
for i in range(4):
    o(f"  s_waitcnt lgkmcnt({3-i})")
    o(f"  buffer_store_dwordx4 v[{8+4*i}:{8+4*i+3}], v{1+i}, s[40:43], 0 offen")
if DBG:
    o("  s_waitcnt vmcnt(0)")
    stamp(5)
    o("  s_waitcnt lgkmcnt(0)")
    o("  s_cmp_lg_u32 s2, {}".format(7))
    o("  s_cbranch_scc1 K1_END")
    o("  v_cmp_eq_u32 vcc, 0, v0")
    o("  s_and_saveexec_b64 s[70:71], vcc")
    o("  s_cbranch_execz K1_END")
    o("  s_load_dwordx2 s[72:73], s[0:1], 64")
    o("  s_waitcnt lgkmcnt(0)")
    srd(76, 72, 73, 256)
    o("  v_mov_b32 v1, 0")
    for i in range(1, 5+1):
        o(f"  s_sub_u32 s73, s{80+2*i}, s80")
        o(f"  v_mov_b32 v2, s73")
        o(f"  buffer_store_dword v2, v1, s[76:79], 0 offen offset:{4*i}")
o("  s_endpgm")

o("K1_GEMM:")
o(f"  s_sub_u32 s3, s2, {PW}")
o("  v_lshrrev_b32 v1, 6, v0")
o("  s_nop 0")
o("  v_readfirstlane_b32 s5, v1")
o("  v_and_b32 v2, 63, v0")
o("  v_and_b32 v3, 31, v2")
o("  v_lshrrev_b32 v4, 5, v2")
o("  v_lshlrev_b32 v10, 4, v0")
o("  s_and_b32 s6, s5, 1")
o("  s_lshr_b32 s26, s5, 1")
o("  s_lshl_b32 s4, s3, 2")
o("  s_add_u32 s4, s4, s26")
o("  s_lshl_b32 s4, s4, 5")
o("  s_waitcnt lgkmcnt(0)")
srd(28, 20, 21, 128*128)
srd(32, 18, 19, 8192)
srd(36, 8, 9, N*128)
XF = 16
WT = 32
WF = 48
AC = 80
o("  s_mov_b32 s26, 8192")
o(f"  buffer_load_dwordx4 v[{WT}:{WT+3}], v10, s[28:31], s26 offen")
o(f"  buffer_load_dwordx4 v[{WT+4}:{WT+7}], v10, s[32:35], 0 offen")
o("  v_add_u32 v7, s4, v3")
o("  v_lshlrev_b32 v7, 7, v7")
o("  v_lshl_add_u32 v7, v4, 4, v7")
for ks in range(4):
    o(f"  buffer_load_dwordx4 v[{XF+ks*4}:{XF+ks*4+3}], v7, s[36:39], 0 offen offset:{ks*32}")
srd_off(40, 24, 25, T_OFF, ROWS*256)
o("  v_lshlrev_b32 v5, 10, v4")
o("  v_bfe_u32 v6, v2, 2, 2")
o("  v_lshl_add_u32 v5, v6, 7, v5")
o("  v_bfe_u32 v6, v2, 4, 1")
o("  v_lshl_add_u32 v5, v6, 5, v5")
o("  v_and_b32 v6, 3, v2")
o("  v_lshl_add_u32 v5, v6, 3, v5")
o("  s_lshl_b32 s26, s6, 6")
o("  v_add_u32 v5, s26, v5")
for i in range(32):
    o(f"  v_mov_b32 v{AC+i}, 0")
o("  v_lshl_add_u32 v9, v4, 2, s4")
o("  v_lshlrev_b32 v9, 8, v9")
o("  v_lshl_add_u32 v9, v3, 2, v9")
o("  s_lshl_b32 s26, s6, 7")
o("  v_add_u32 v9, s26, v9")
for q in range(4):
    o(f"  s_mov_b32 s{64+q}, {(8*q)*256}")
o("  v_mov_b32 v12, 0x71800000")
o("  v_mov_b32 v11, 0xf1800000")
o("  s_waitcnt vmcnt(4)")
for idx, off in enumerate((0, 8192)):
    o(f"  ds_write_b128 v10, v[{WT+4*idx}:{WT+4*idx+3}] offset:{off}")
o("  s_waitcnt lgkmcnt(0)")
o("  s_barrier")
for m in range(2):
    for ks in range(4):
        for h in range(2):
            f = WF+m*16+ks*4+2*h
            o(f"  ds_read_b64_tr_b16 v[{f}:{f+1}], v5 offset:{m*8192 + ks*2048 + h*512}")
o("  s_waitcnt vmcnt(0) lgkmcnt(0)")
stamp(1)
for m in range(2):
    for ks in range(4):
        a = XF+ks*4
        b = WF+m*16+ks*4
        c = AC+m*16
        o(f"  v_mfma_f32_32x32x16_bf16 v[{c}:{c+15}], v[{a}:{a+3}], v[{b}:{b+3}], v[{c}:{c+15}]")
o("  s_nop 15")
o("  s_nop 3")
stamp(2)
for i in range(16):
    a1 = AC+i
    a2 = AC+16+i
    o(f"  v_mul_f32 v13, {NLOG2E:#x}, v{a1}")
    o(f"  v_med3_f32 v13, v13, v11, v12")
    o(f"  v_cvt_pk_bf16_f32 v13, v13, v13")
    o(f"  v_and_b32 v13, 0xffff, v13")
    o(f"  v_and_b32 v14, 0x7fffffff, v{a2}")
    o(f"  v_and_b32 v15, 0x80000000, v{a2}")
    o(f"  v_sub_u32 v14, v14, v13")
    o(f"  v_add_u32 v14, 0x8000, v14")
    o(f"  v_max_i32 v14, 0, v14")
    o(f"  v_min_i32 v14, 0x7f7fffff, v14")
    o(f"  v_and_b32 v14, 0xffff0000, v14")
    o(f"  v_or3_b32 v{a1}, v14, v15, v13")
    o(f"  buffer_store_dword v{a1}, v9, s[40:43], s{64+(i>>2)} offen offset:{(i&3)*256}")
if DBG:
    o("  s_waitcnt vmcnt(0)")
    stamp(3)
    o("  s_waitcnt lgkmcnt(0)")
    o("  s_cmp_lg_u32 s2, {}".format(PW+7))
    o("  s_cbranch_scc1 K1_END")
    o("  v_cmp_eq_u32 vcc, 0, v0")
    o("  s_and_saveexec_b64 s[70:71], vcc")
    o("  s_cbranch_execz K1_END")
    o("  s_load_dwordx2 s[72:73], s[0:1], 64")
    o("  s_waitcnt lgkmcnt(0)")
    srd(76, 72, 73, 256)
    o("  v_mov_b32 v1, 64")
    for i in range(1, 3+1):
        o(f"  s_sub_u32 s73, s{80+2*i}, s80")
        o(f"  v_mov_b32 v2, s73")
        o(f"  buffer_store_dword v2, v1, s[76:79], 0 offen offset:{4*i}")
o("K1_END:")
o("  s_endpgm")

L_HIST = 0
L_GOFF = 256
L_MISC = 512
L_HN = 576
L_HEAD = 1024
L_ACC = L_HEAD + 16*256
L_A = L_ACC + BN*256
L_U = L_A + 64*256
L_SORT = L_U + 64*256
L_X = 150 * 1024
L_W = L_HEAD
NIT = KSEG // 4
o(".globl mpnn_k2_kernel")
o(".p2align 8")
o(".type mpnn_k2_kernel,@function")
o("mpnn_k2_kernel:")
o(f"  s_cmp_ge_u32 s2, {NB}")
o("  s_cbranch_scc1 K2_END")
stamp(0)
o("  s_load_dwordx4 s[8:11], s[0:1], 48")
o("  s_load_dwordx2 s[12:13], s[0:1], 64")
o("  s_load_dwordx2 s[14:15], s[0:1], 32")
o("  s_load_dwordx2 s[16:17], s[0:1], 0")
o("  s_load_dwordx2 s[24:25], s[0:1], 72")
o("  v_lshrrev_b32 v1, 6, v0")
o("  v_and_b32 v2, 63, v0")
o("  v_readfirstlane_b32 s5, v1")
o("  v_lshlrev_b32 v3, 4, v0")
o("  v_lshrrev_b32 v4, 3, v0")
o("  v_and_b32 v5, 7, v0")
o("  v_lshlrev_b32 v5, 1, v5")
o("  v_and_b32 v6, 15, v2")
o("  v_lshlrev_b32 v6, 4, v6")
o("  v_lshlrev_b32 v7, 2, v4")
o("  s_and_b32 s7, s2, 7")
o("  s_lshl_b32 s7, s7, 5")
o("  s_lshr_b32 s58, s2, 3")
o("  s_or_b32 s7, s7, s58")
o("  s_lshl_b32 s7, s7, 10")
o(f"  s_mul_i32 s6, s2, {BN*256}")
o("  s_waitcnt lgkmcnt(0)")
srd(48, 8, 9, 129*128)
srd(44, 14, 15, 8192)
srd(40, 16, 17, N*128)
srd_off(28, 24, 25, OFFT_OFF, 257*1024)
o("  buffer_load_dword v8, v7, s[28:31], s7 offen")
o("  buffer_load_dword v9, v7, s[28:31], s7 offen offset:1024")
o("  buffer_load_dword v24, v7, s[28:31], s7 offen offset:512")
o("  buffer_load_dword v25, v7, s[28:31], s7 offen offset:1536")
srd_off(32, 24, 25, REC_OFF, PW*CH*8)
srd_off(36, 24, 25, T_OFF, ROWS)
o("  s_or_b32 s37, s37, 0x01000000")
srd(52, 10, 11, N*128)
o("  v_mov_b32 v120, 0")
o("  v_mov_b32 v121, 0")
o("  v_mov_b32 v122, 0")
o("  v_mov_b32 v123, 0")
o("  s_cmp_lg_u32 s5, 0")
o("  s_cbranch_scc1 K2_Z2")
o(f"  ds_write_b128 v3, v[120:123] offset:0")
o("K2_Z2:")
o("  v_lshrrev_b32 v10, 4, v2")
o("  v_and_b32 v11, 1, v10")
o("  v_lshlrev_b32 v11, 3, v11")
o("  v_lshrrev_b32 v10, 1, v10")
o("  v_lshl_add_u32 v11, v10, 2, v11")
o("  v_add_u32 v36, v11, v6")
o("  v_mov_b32 v27, 1")
o("  v_mov_b32 v32, 0x3f80")
o("  s_mov_b32 s60, 0")
o(f"  v_mov_b32 v11, {CH*8}")
o("  v_add_u32 v10, 128, v4")
o("  s_waitcnt vmcnt(0)")
stamp(1)
o("  v_sub_u32 v9, v9, v8")
o("  v_sub_u32 v25, v25, v24")
o(f"  v_cmp_gt_u32 vcc, {PW}, v10")
o("  v_add_u32 v8, v8, v5")
o("  v_add_u32 v24, v24, v5")
o("  v_cndmask_b32 v25, 0, v25, vcc")
o(f"  v_min_u32 v9, {CH}, v9")
o(f"  v_min_u32 v25, {CH}, v25")
o("  v_lshlrev_b32 v8, 3, v8")
o("  v_lshlrev_b32 v24, 3, v24")
o("  v_mad_u32_u24 v8, v4, v11, v8")
o("  v_mad_u32_u24 v24, v10, v11, v24")
o("  v_max_u32 v23, v9, v25")
o("  v_sub_u32 v26, v9, v5")
o("  v_sub_u32 v25, v25, v5")
RL = 40
RK = 64
REM = (26, 25)
ADR = (8, 24)
NI = KSEG // 16
o("K2_ROUND:")
for p in range(2):
    for it in range(NI):
        q = p*NI + it
        o(f"  v_cmpx_lt_i32 vcc, {16*it}, v{REM[p]}")
        o(f"  s_cbranch_execz K2_LD_DONE{p}")
        o(f"  buffer_load_dwordx4 v[{RL+4*q}:{RL+4*q+3}], v{ADR[p]}, s[32:35], 0 offen offset:{128*it}")
    o(f"K2_LD_DONE{p}:")
    o("  s_mov_b64 exec, -1")
o("  s_cmp_lg_u32 s60, 0")
o("  s_cbranch_scc1 K2_SETUP_SKIP")
o("  v_lshrrev_b32 v10, 1, v6")
o(f"  v_add_u32 v10, {128*128}, v10")
o("  buffer_load_dwordx2 v[20:21], v10, s[48:51], 0 offen")
o("  v_and_b32 v10, 0x1ff0, v3")
o("  s_cmp_ge_u32 s5, 8")
o("  s_cbranch_scc1 K2_W1")
o("  buffer_load_dwordx4 v[12:15], v10, s[48:51], 0 offen")
o(f"  s_mul_i32 s59, s2, {BN*128}")
o("  buffer_load_dwordx4 v[88:91], v3, s[40:43], s59 offen")
o("  s_waitcnt lgkmcnt(0)")
o("  s_barrier")
stamp(7)
o("  s_waitcnt vmcnt(3)")
o("  s_branch K2_W2")
o("K2_W1:")
o("  buffer_load_dwordx4 v[12:15], v10, s[44:47], 0 offen")
o("  s_waitcnt lgkmcnt(0)")
o("  s_barrier")
stamp(7)
o("  s_waitcnt vmcnt(2)")
o("K2_W2:")
o(f"  v_mov_b32 v11, {L_MISC}")
o("  ds_max_u32 v11, v23")
o("  s_branch K2_SETUP_DONE")
o("K2_SETUP_SKIP:")
o("  s_waitcnt lgkmcnt(0)")
o("  s_barrier")
o("  s_waitcnt vmcnt(0)")
o("K2_SETUP_DONE:")
stamp(2)
def rec_loop(tag, body):
    for p in range(2):
        for it in range(NI):
            for h in range(2):
                q = p*NI + it
                o(f"  v_cmpx_lt_i32 vcc, {16*it+h}, v{REM[p]}")
                o(f"  s_cbranch_execz K2_{tag}_DONE{p}")
                body(RL+4*q+2*h, 2*q+h)
        o(f"K2_{tag}_DONE{p}:")
        o("  s_mov_b64 exec, -1")
def b_at(r, i):
    o(f"  v_lshlrev_b32 v{r+1}, 2, v{r+1}")
    o(f"  ds_add_rtn_u32 v{RK+i}, v{r+1}, v27 offset:{L_HIST}")
rec_loop("AT", b_at)
o("  s_cmp_lg_u32 s60, 0")
o("  s_cbranch_scc1 K2_WST_SKIP")
o("  s_waitcnt vmcnt(0)")
o(f"  ds_write_b128 v3, v[12:15] offset:{L_W}")
o("  s_cmp_ge_u32 s5, 8")
o("  s_cbranch_scc1 K2_XST")
o("  v_lshrrev_b32 v10, 3, v0")
o("  v_lshl_add_u32 v10, v10, 4, v3")
o(f"  v_add_u32 v10, {L_X}, v10")
o("  ds_write_b128 v10, v[88:91]")
o("K2_XST:")
o("  v_lshlrev_b32 v28, 16, v20")
o("  v_and_b32 v29, 0xffff0000, v20")
o("  v_lshlrev_b32 v30, 16, v21")
o("  v_and_b32 v31, 0xffff0000, v21")
for j in range(4):
    o(f"  v_mul_f32 v{28+j}, {NLOG2E:#x}, v{28+j}")
o("K2_WST_SKIP:")
o("  s_waitcnt lgkmcnt(0)")
o("  s_barrier")
stamp(8)
o("  s_cmp_lg_u32 s60, 0")
o("  s_cbranch_scc1 K2_PF_SKIP")
o("  s_lshr_b32 s58, s2, 3")
o(f"  s_mul_i32 s58, s58, {392*256}")
for i in range(7 if EXP == "prefetch" else 0):
    o(f"  buffer_load_dwordx4 v[104:107], v3, s[36:39], s58 offen")
    o(f"  s_add_u32 s58, s58, 16384")

o("K2_PF_SKIP:")
o("  v_lshlrev_b32 v11, 2, v2")
o(f"  ds_read_b32 v37, v11 offset:{L_HIST}")
o(f"  v_cmp_gt_u32 s[56:57], {BN}, v2")
o("  s_waitcnt lgkmcnt(0)")
o("  v_add_u32 v34, 3, v37")
o("  v_and_b32 v34, -4, v34")
o("  v_max_u32 v34, 4, v34")
o("  v_cndmask_b32 v34, 0, v34, s[56:57]")
o("  v_mov_b32 v35, v34")
wave_scan(35)
o("  v_readlane_b32 s61, v35, 63")
o("  v_sub_u32 v35, v35, v34")
o("  s_add_u32 s62, s61, 15")
o("  s_and_b32 s62, s62, -16")
o("  v_mov_b32 v33, s62")
o("  s_nop 1")
o("  v_cndmask_b32 v33, v33, v35, s[56:57]")
o("  s_cmp_lg_u32 s5, 0")
o("  s_cbranch_scc1 K2_PAD_DONE")
o(f"  v_mov_b32 v38, {N}")
o("  v_mov_b32 v39, 0")
o("  v_add_u32 v10, v35, v37")
o("  v_lshlrev_b32 v10, 3, v10")
o("  v_sub_u32 v34, v34, v37")
for j in range(4):
    o(f"  v_cmpx_lt_u32 vcc, {j}, v34")
    o(f"  ds_write_b64 v10, v[38:39] offset:{L_SORT+8*j}")
o("  s_mov_b64 exec, -1")
o("  v_add_u32 v10, s61, v2")
o("  v_lshlrev_b32 v10, 3, v10")
o("  v_cmpx_gt_u32 vcc, 16, v2")
o(f"  ds_write_b64 v10, v[38:39] offset:{L_SORT}")
o("  s_mov_b64 exec, -1")
o("K2_PAD_DONE:")
for p in range(2):
    for it in range(NI):
        for h in range(2):
            q = p*NI + it
            r = RL+4*q+2*h
            o(f"  v_cmp_lt_i32 vcc, {16*it+h}, v{REM[p]}")
            o(f"  s_cbranch_vccz K2_SC1_DONE{p}")
            o(f"  ds_bpermute_b32 v{76+2*q+h}, v{r+1}, v33")
    o(f"K2_SC1_DONE{p}:")
o("  s_waitcnt lgkmcnt(0)")
def b_wr(r, i):
    o(f"  v_add_u32 v11, v{76+i}, v{RK+i}")
    o(f"  v_lshlrev_b32 v11, 3, v11")
    o(f"  v_and_b32 v{r+1}, 0xffff0000, v{r}")
    o(f"  v_and_b32 v{r}, 0x3fff, v{r}")
    o(f"  ds_write_b64 v11, v[{r}:{r+1}] offset:{L_SORT}")
rec_loop("SC2", b_wr)
stamp(9)
o("  v_readlane_b32 s62, v33, 49")
o("  s_lshr_b32 s63, s62, 2")
o("  s_mul_i32 s64, s63, s5")
o("  s_lshr_b32 s64, s64, 4")
o("  s_add_u32 s65, s5, 1")
o("  s_mul_i32 s65, s63, s65")
o("  s_lshr_b32 s65, s65, 4")
o("  s_lshl_b32 s66, s64, 2")
o("  s_lshl_b32 s67, s65, 2")
o(f"  v_cmp_gt_u32 s[56:57], {BN}, v2")
o("  v_cmp_ge_u32 vcc, s66, v33")
o("  s_and_b64 vcc, vcc, s[56:57]")
o("  s_bcnt1_i32_b64 s68, vcc")
o("  s_sub_u32 s68, s68, 1")
o("  s_add_u32 s69, s68, 1")
o("  v_readlane_b32 s70, v33, s69")
o("  v_readlane_b32 s72, v33, s68")
o("  s_cmp_lg_u32 s72, s66")
o("  s_cselect_b32 s73, 1, 0")
o("  s_cmp_ge_u32 s64, s65")
o("  s_cselect_b32 s73, 0, s73")
o("  s_cmp_lg_u32 s73, 0")
o("  s_cselect_b32 s74, s68, -1")
o("  v_mov_b32 v11, s74")
o("  s_lshl_b32 s74, s5, 2")
o("  v_mov_b32 v10, s74")
o(f"  ds_write_b32 v10, v11 offset:{L_HN}")
o("  s_waitcnt lgkmcnt(0)")
o("  s_barrier")
stamp(3)
if DBG:
    pass
AV = 40
AC2 = 44
RB = 48
EBL = [12,13,14,15, 20,21,22,23, 4,5,9,10]
WB = 72
TT = 120
NBUF = int(os.environ.get("NBUF","2"))
VRA = 34
VAA = 35
VRB = 37
o("  v_lshrrev_b32 v11, 4, v2")
o("  v_lshlrev_b32 v11, 3, v11")
o("  s_lshl_b32 s71, s66, 3")
o(f"  v_add_u32 v{VRA}, s71, v11")
o("  v_mov_b32 v38, 1.0")
o("  v_mov_b32 v39, 1.0")
R = int(os.environ.get("RING","4"))
for i in range(R):
    o(f"  v_mov_b32 v{RB+2*i+1}, v6")
def issue1(j, ahead, off):
    o(f"  s_add_u32 s78, s66, {4*ahead}")
    o("  s_cmp_lt_u32 s78, s67")
    o(f"  s_cselect_b32 s38, {ROWS}, 0")
    r = RB+2*j
    if EXP == "samerow":
        o(f"  v_mov_b32 v{r}, 0")
    o(f"  buffer_load_dwordx4 v[{WB+4*j}:{WB+4*j+3}], v[{r}:{r+1}], s[36:39], 0 idxen offen")
    o(f"  ds_read_b32 v{r}, v{VRB} offset:{L_SORT+off}")
uid = [0]
def compute1(i, off):
    e = EBL[i]
    ep, es = e & ~1, e & 1
    w = WB+4*i
    t = TT + (i & 1)*4
    o(f"  s_waitcnt vmcnt({R-1})")
    for j in (0, 2):
        o(f"  v_pk_fma_f32 v[{t+j}:{t+j+1}], v[{ep}:{ep+1}], v[{28+j}:{29+j}], v[{AV+j}:{AV+j+1}] op_sel:[{es},0,0] op_sel_hi:[{es},1,1]")
    o(f"  ds_read_b32 v{e}, v{VRA} offset:{L_SORT+off+4}")
    for j in range(4):
        o(f"  v_dot2_f32_bf16 v{t+j}, v{w+j}, v32, v{t+j}")
    for j in range(4):
        o(f"  v_exp_f32 v{t+j}, v{t+j}")
    o("  s_add_u32 s66, s66, 4")
    for j in (0, 2):
        o(f"  v_pk_add_f32 v[{t+j}:{t+j+1}], v[{t+j}:{t+j+1}], v[38:39]")
    for j in range(4):
        o(f"  v_rcp_f32 v{t+j}, v{t+j}")
    o("  s_cmp_lg_u32 s66, s70")
    for j in (0, 2):
        o(f"  v_pk_fma_f32 v[{AC2+j}:{AC2+j+1}], v[{t+j}:{t+j+1}], v[{w+j}:{w+j+1}], v[{AC2+j}:{AC2+j+1}]")
    uid[0] += 1
    u = uid[0]
    o(f"  s_cbranch_scc1 K2_NF{u}")
    o("  s_getpc_b64 s[76:77]")
    o("  s_add_u32 s76, s76, 12")
    o("  s_addc_u32 s77, s77, 0")
    o("  s_branch K2_FLUSH")
    o(f"K2_NF{u}:")
for i in range(R):
    o(f"  ds_read_b32 v{RB+2*i}, v{VRA} offset:{L_SORT+32*i}")
    o(f"  ds_read_b32 v{EBL[i]}, v{VRA} offset:{L_SORT+32*i+4}")
o(f"  v_add_u32 v{VRA}, {32*R}, v{VRA}")
o(f"  v_mov_b32 v{VRB}, v{VRA}")
o("  s_waitcnt lgkmcnt(0)")
for i in range(R-1):
    issue1(i, i, 32*i)
o(f"  v_add_u32 v{VRB}, {32*(R-1)}, v{VRB}")
o("  s_cmp_lg_u32 s60, 0")
o("  s_cbranch_scc1 K2_MM_SKIP")
o("  s_cmp_ge_u32 s5, 8")
o("  s_cbranch_scc1 K2_MM_DONE")
ACM = 104
o("  v_lshrrev_b32 v1, 5, v2")
o("  v_lshlrev_b32 v7, 10, v1")
o("  v_bfe_u32 v11, v2, 2, 2")
o("  v_lshl_add_u32 v7, v11, 7, v7")
o("  v_bfe_u32 v11, v2, 4, 1")
o("  v_lshl_add_u32 v7, v11, 5, v7")
o("  v_and_b32 v11, 3, v2")
o("  v_lshl_add_u32 v7, v11, 3, v7")
o("  s_and_b32 s58, s5, 1")
o("  s_bfe_u32 s59, s5, 0x10001")
o("  s_lshl_b32 s78, s58, 6")
o("  s_lshl_b32 s79, s59, 13")
o("  s_add_u32 s78, s78, s79")
o("  v_add_u32 v7, s78, v7")
o("  s_lshr_b32 s78, s5, 2")
o(f"  s_mul_i32 s78, s78, {32*144}")
o(f"  s_add_u32 s78, s78, {L_X}")
o("  v_and_b32 v11, 31, v2")
o("  v_mul_u32_u24 v11, 144, v11")
o("  v_lshl_add_u32 v11, v1, 4, v11")
o("  v_add_u32 v11, s78, v11")
for i in range(16):
    o(f"  v_mov_b32 v{ACM+i}, 0")
for half in range(2):
    for k2 in range(2):
        ks = half*2 + k2
        for h in range(2):
            f = 40+k2*4+2*h
            o(f"  ds_read_b64_tr_b16 v[{f}:{f+1}], v7 offset:{L_W + ks*2048 + h*512}")
        o(f"  ds_read_b128 v[{120+k2*4}:{123+k2*4}], v11 offset:{ks*32}")
    o("  s_waitcnt lgkmcnt(0)")
    for k2 in range(2):
        o(f"  v_mfma_f32_32x32x16_bf16 v[{ACM}:{ACM+15}], v[{120+k2*4}:{123+k2*4}], v[{40+k2*4}:{43+k2*4}], v[{ACM}:{ACM+15}]")
    o("  s_nop 7")
o("  s_lshr_b32 s78, s5, 2")
o("  s_lshl_b32 s78, s78, 13")
o("  s_lshl_b32 s79, s58, 7")
o("  s_add_u32 s78, s78, s79")
o("  s_lshl_b32 s79, s59, 14")
o("  s_add_u32 s78, s78, s79")
o("  v_lshlrev_b32 v7, 10, v1")
o("  v_and_b32 v11, 31, v2")
o("  v_lshl_add_u32 v7, v11, 2, v7")
o("  v_add_u32 v7, s78, v7")
o(f"  s_cmp_eq_u32 s59, 0")
o(f"  s_cselect_b32 s79, {NLOG2E:#x}, 1.0")
o("  v_mov_b32 v11, s79")
o("  s_nop 7")
for i in range(16):
    o(f"  v_mul_f32 v{ACM+i}, v{ACM+i}, v11")
    o(f"  ds_write_b32 v7, v{ACM+i} offset:{L_A + ((i&3) + 8*(i>>2))*256}")
o("K2_MM_DONE:")
o("  s_waitcnt lgkmcnt(0)")
o("  s_barrier")
o("K2_MM_SKIP:")
o("  s_cmp_ge_u32 s64, s65")
o("  s_cbranch_scc1 K2_NOFINAL")
o("  s_lshl_b32 s71, s68, 8")
o(f"  v_add_u32 v{VAA}, s71, v6")
o(f"  ds_read_b128 v[{AV}:{AV+3}], v{VAA} offset:{L_A}")
for j in range(4):
    o(f"  v_mov_b32 v{AC2+j}, 0")
o("  s_setprio 3")
pid = [0]
def prio_update():
    if not PRIO:
        return
    pid[0] += 1
    u = pid[0]
    o("  s_sub_u32 s78, s67, s66")
    o(f"  s_cmp_gt_u32 s78, {16*P3}")
    o(f"  s_cbranch_scc1 K2_PD{u}")
    o(f"  s_cmp_gt_u32 s78, {16*P2}")
    o(f"  s_cbranch_scc1 K2_PA{u}")
    o(f"  s_cmp_gt_u32 s78, {16*P1}")
    o(f"  s_cbranch_scc1 K2_PB{u}")
    o("  s_setprio 0")
    o(f"  s_branch K2_PD{u}")
    o(f"K2_PA{u}:")
    o("  s_setprio 2")
    o(f"  s_branch K2_PD{u}")
    o(f"K2_PB{u}:")
    o("  s_setprio 1")
    o(f"K2_PD{u}:")
o("  s_waitcnt lgkmcnt(0)")
o("K2_LOOP:")
for i in range(R):
    o("  s_waitcnt lgkmcnt(2)")
    issue1((i - 1) % R, R-1, 32*i)
    compute1(i, 32*i)
    o("  s_cmp_ge_u32 s66, s67")
    o("  s_cbranch_scc1 K2_LOOP_EXIT")
o(f"  v_add_u32 v{VRA}, {32*R}, v{VRA}")
o(f"  v_add_u32 v{VRB}, {32*R}, v{VRB}")
prio_update()
o("  s_branch K2_LOOP")
o("K2_LOOP_EXIT:")
o("  s_setprio 0")
o("  v_readlane_b32 s72, v33, s68")
o("  s_cmp_ge_u32 s72, s67")
o("  s_cbranch_scc1 K2_NOFINAL")
o("  s_getpc_b64 s[76:77]")
o("  s_add_u32 s76, s76, 12")
o("  s_addc_u32 s77, s77, 0")
o("  s_branch K2_FLUSH")
o("K2_NOFINAL:")
o("  s_waitcnt vmcnt(0) lgkmcnt(0)")
o("K2_MAIN_DONE:")
stamp(4)
o(f"  v_mov_b32 v11, {L_MISC}")
o("  ds_read_b32 v34, v11")
o("  s_barrier")
o("  v_lshlrev_b32 v10, 2, v2")
o(f"  ds_read_b32 v35, v10 offset:{L_HN}")
o(f"  ds_read_b32 v11, v10 offset:{L_HN-4}")
o("  s_lshl_b32 s71, s5, 8")
o("  v_add_u32 v20, s71, v36")
o(f"  ds_read_b32 v21, v20 offset:{L_HEAD}")
o("  s_waitcnt lgkmcnt(0)")
o("  v_readfirstlane_b32 s61, v34")
o(f"  s_min_u32 s61, s61, {CH}")
o("  v_cmp_eq_u32 vcc, v35, v11")
o("  v_cmp_ne_u32 s[56:57], -1, v35")
o("  s_and_b64 vcc, vcc, s[56:57]")
o("  s_and_b32 s72, vcc_lo, 0xfffe")
o("  s_cmp_lg_u32 s72, 0")
o("  s_cbranch_scc1 K2_CB_SLOW")
o("  s_cmp_lt_u32 s63, 16")
o("  s_cbranch_scc1 K2_CB_SLOW")
o("  v_readlane_b32 s72, v35, s5")
o("  s_cmp_eq_u32 s72, -1")
o("  s_cbranch_scc1 K2_CB_F1")
o("  s_lshl_b32 s72, s72, 8")
o("  v_add_u32 v20, s72, v36")
o(f"  ds_read_b32 v22, v20 offset:{L_ACC}")
o("  s_waitcnt lgkmcnt(0)")
o("  v_add_f32 v22, v22, v21")
o(f"  ds_write_b32 v20, v22 offset:{L_ACC}")
o("  s_waitcnt lgkmcnt(0)")
o("K2_CB_F1:")
o("  s_barrier")
o(f"  ds_read_b128 v[12:15], v3 offset:{L_ACC}")
o(f"  ds_read_b128 v[16:19], v3 offset:{L_U}")
o("  s_waitcnt lgkmcnt(0)")
o("  s_branch K2_CB_DONE")
o("K2_CB_SLOW:")
o(f"  ds_read_b128 v[12:15], v3 offset:{L_ACC}")
o(f"  ds_read_b128 v[16:19], v3 offset:{L_U}")
o("  v_lshrrev_b32 v10, 4, v0")
o("  s_waitcnt lgkmcnt(0)")
for w in range(16):
    o(f"  v_readlane_b32 s72, v35, {w}")
    o("  s_nop 1")
    o("  v_cmpx_eq_u32 vcc, s72, v10")
    o(f"  s_cbranch_execz K2_CB{w}")
    o(f"  ds_read_b128 v[20:23], v6 offset:{L_HEAD+256*w}")
    o("  s_waitcnt lgkmcnt(0)")
    for j in range(4):
        o(f"  v_add_f32 v{12+j}, v{12+j}, v{20+j}")
    o(f"K2_CB{w}:")
    o("  s_mov_b64 exec, -1")
o("K2_CB_DONE:")
o(f"  s_add_u32 s60, s60, {KSEG}")
o("  s_cmp_ge_u32 s60, s61")
o("  s_cbranch_scc1 K2_FINAL")
o("  v_cmp_gt_u32 vcc, 784, v0")
o("  s_and_saveexec_b64 s[56:57], vcc")
o("  s_cbranch_execz K2_NR0")
o(f"  ds_write_b128 v3, v[12:15] offset:{L_ACC}")
o("K2_NR0:")
o("  s_mov_b64 exec, s[56:57]")
o("  s_cmp_lg_u32 s5, 0")
o("  s_cbranch_scc1 K2_NR1")
o("  v_lshlrev_b32 v11, 2, v2")
o("  v_mov_b32 v34, 0")
o(f"  ds_write_b32 v11, v34 offset:{L_HIST}")
o("K2_NR1:")
o(f"  v_subrev_u32 v26, {KSEG}, v26")
o(f"  v_subrev_u32 v25, {KSEG}, v25")
o(f"  v_add_u32 v8, {KSEG*8}, v8")
o(f"  v_add_u32 v24, {KSEG*8}, v24")
o("  s_branch K2_ROUND")
o("K2_FINAL:")
stamp(5)
if DBG:
    pass
o("  v_cmp_gt_u32 vcc, 784, v0")
o("  s_and_saveexec_b64 s[56:57], vcc")
o("  s_cbranch_execz K2_FIN2")
o("  v_lshlrev_b32 v11, 3, v0")
o(f"  s_mul_i32 s6, s2, {BN*128}")
for j in range(4):
    o(f"  v_add_f32 v{12+j}, v{12+j}, v{16+j}")
for j in range(4):
    o(f"  v_mul_f32 v{20+j}, {NLOG2E:#x}, v{12+j}")
for j in range(4):
    o(f"  v_exp_f32 v{20+j}, v{20+j}")
for j in range(4):
    o(f"  v_add_f32 v{20+j}, 1.0, v{20+j}")
for j in range(4):
    o(f"  v_rcp_f32 v{20+j}, v{20+j}")
o("  s_nop 0")
for j in range(4):
    o(f"  v_mul_f32 v{12+j}, v{12+j}, v{20+j}")
o("  v_cvt_pk_bf16_f32 v12, v12, v13")
o("  v_cvt_pk_bf16_f32 v13, v14, v15")
o("  buffer_store_dwordx2 v[12:13], v11, s[52:55], s6 offen")
o("K2_FIN2:")
o("  s_mov_b64 exec, -1")
if DBG:
    stamp(6)
    o("  s_waitcnt lgkmcnt(0)")
    o("  s_cmp_lg_u32 s2, 5")
    o("  s_cbranch_scc1 K2_END")
    o("  s_lshl_b32 s72, s5, 4")
    srd(76, 12, 13, 256)
    o("  v_mov_b32 v1, s72")
    for n, i in enumerate(STAMPS):
        o(f"  s_sub_u32 s73, s{80+2*i}, s80")
        o(f"  v_mov_b32 v2, s73")
        o(f"  buffer_store_dword v2, v1, s[76:79], 0 offen offset:{4*n}")
o("K2_END:")
o("  s_endpgm")
o("K2_FLUSH:")
o("  s_nop 1")
o(f"  v_permlane32_swap_b32 v{AC2}, v{AC2+1}")
o(f"  v_permlane32_swap_b32 v{AC2+2}, v{AC2+3}")
o("  s_lshl_b32 s71, s68, 8")
o(f"  v_add_u32 v{VAA}, s71, v6")
o(f"  v_add_f32 v{AC2}, v{AC2}, v{AC2+1}")
o(f"  v_add_f32 v{AC2+2}, v{AC2+2}, v{AC2+3}")
o(f"  ds_read_b128 v[{AV}:{AV+3}], v{VAA} offset:{L_A+256}")
o(f"  v_add_u32 v{VAA}, s71, v36")
o(f"  v_permlane16_swap_b32 v{AC2}, v{AC2+2}")
o("  s_cmp_lg_u32 s73, 0")
o("  s_cbranch_scc1 K2_FL_HEAD")
o(f"  v_add_f32 v{AC2}, v{AC2}, v{AC2+2}")
o("  s_cmp_eq_u32 s60, 0")
o("  s_cbranch_scc1 K2_FL_W")
o(f"  ds_read_b32 v{AC2+1}, v{VAA} offset:{L_ACC}")
o("  s_waitcnt lgkmcnt(0)")
o(f"  v_add_f32 v{AC2}, v{AC2}, v{AC2+1}")
o("K2_FL_W:")
o(f"  ds_write_b32 v{VAA}, v{AC2} offset:{L_ACC}")
o("  s_branch K2_FL_C")
o("K2_FL_HEAD:")
o(f"  v_add_f32 v{AC2}, v{AC2}, v{AC2+2}")
o("  s_lshl_b32 s71, s5, 8")
o(f"  v_add_u32 v{VAA}, s71, v36")
o(f"  ds_write_b32 v{VAA}, v{AC2} offset:{L_HEAD}")
o("  s_mov_b32 s73, 0")
o("K2_FL_C:")
o("  s_add_u32 s68, s68, 1")
o("  s_add_u32 s69, s68, 1")
o("  v_readlane_b32 s70, v33, s69")
o("  s_waitcnt lgkmcnt(0)")
for j in range(4):
    o(f"  v_mov_b32 v{AC2+j}, 0")
o("  s_setpc_b64 s[76:77]")

o('.section .rodata,"a"')
for name, vg in (("mpnn_k1_kernel", 112), ("mpnn_k2_kernel", 128)):
    o(".p2align 6")
    o(f".amdhsa_kernel {name}")
    o(f"  .amdhsa_next_free_vgpr {vg}")
    o("  .amdhsa_next_free_sgpr 102")
    o(f"  .amdhsa_accum_offset {vg}")
    o("  .amdhsa_group_segment_fixed_size 0")
    o("  .amdhsa_kernarg_size 80")
    o("  .amdhsa_user_sgpr_count 2")
    o("  .amdhsa_user_sgpr_kernarg_segment_ptr 1")
    o("  .amdhsa_system_sgpr_workgroup_id_x 1")
    o(".end_amdhsa_kernel")

import re
_i = out.index("mpnn_k2_kernel:")
for _k in range(_i):
    if out[_k].lstrip().startswith("buffer_store_dword"):
        out[_k] += " sc1"
open(sys.argv[1] if len(sys.argv) > 1 else "standalone__edge_featured_mpnn_egc__graph.s", "w").write("\n".join(out) + "\n")
```

```python
import sys

N = 12500
E = 800000
NB = 256
BN = 49
PW = 250
CH = 3200
GW = 98
ROWS = 12544
KSEG = 48
T_OFF = 0
A_OFF = 4 << 20
U_OFF = 8 << 20
REC_OFF = 12 << 20
OFFT_OFF = 20 << 20
NLOG2E = 0xbfb8aa3b

import os
DBG = int(os.environ.get("DBG","0"))
EXP = os.environ.get("EXP","")
PRIO = int(os.environ.get("PRIO","1"))
STAMPS = [int(x) for x in os.environ.get("STAMPS","2,3,4,5").split(",")]
P1, P2, P3 = [int(x) for x in os.environ.get("PTH","1,3,6").split(",")]
out = []
def stamp(i):
    if DBG:
        o(f"  s_memtime s[{80+2*i}:{81+2*i}]")
def o(s=""):
    out.append(s)

def srd(d, lo, hi, size):
    o(f"  s_mov_b32 s{d}, s{lo}")
    o(f"  s_and_b32 s{d+1}, s{hi}, 0xffff")
    o(f"  s_mov_b32 s{d+2}, {size}")
    o(f"  s_mov_b32 s{d+3}, 0x00020000")

def srd_off(d, lo, hi, off, size):
    o(f"  s_add_u32 s{d}, s{lo}, {off}")
    o(f"  s_addc_u32 s{d+1}, s{hi}, 0")
    o(f"  s_and_b32 s{d+1}, s{d+1}, 0xffff")
    o(f"  s_mov_b32 s{d+2}, {size}")
    o(f"  s_mov_b32 s{d+3}, 0x00020000")

def wave_scan(v, tmp=None):
    for sh in (1, 2, 4, 8):
        o("  s_nop 1")
        o(f"  v_add_u32_dpp v{v}, v{v}, v{v} row_shr:{sh} row_mask:0xf bank_mask:0xf")
    o("  s_nop 1")
    o(f"  v_add_u32_dpp v{v}, v{v}, v{v} row_bcast:15 row_mask:0xa bank_mask:0xf")
    o("  s_nop 1")
    o(f"  v_add_u32_dpp v{v}, v{v}, v{v} row_bcast:31 row_mask:0xc bank_mask:0xf")
    o("  s_nop 1")

K2_LDS = 160 * 1024
K1_LDS = 36 * 1024
o(f"; @launch kernel=mpnn_k1_kernel grid=({PW+GW},1,1) block=(512,1,1) lds={K1_LDS}")
o(f"; @launch kernel=mpnn_k2_kernel grid=({NB},1,1) block=(1024,1,1) lds={K2_LDS}")
o('.amdgcn_target "amdgcn-amd-amdhsa--gfx950"')
o(".text")

o(".globl mpnn_k1_kernel")
o(".p2align 8")
o(".type mpnn_k1_kernel,@function")
o("mpnn_k1_kernel:")
o(f"  s_cmp_ge_u32 s2, {PW+GW}")
o("  s_cbranch_scc1 K1_END")
stamp(0)
if os.environ.get("GFIRST"):
    o(f"  s_add_u32 s3, s2, {PW}")
    o(f"  s_sub_u32 s4, s2, {GW}")
    o(f"  s_cmp_lt_u32 s2, {GW}")
    o("  s_cselect_b32 s2, s3, s4")
o("  s_load_dwordx8 s[8:15], s[0:1], 0")
o("  s_load_dwordx8 s[16:23], s[0:1], 32")
o("  s_load_dwordx2 s[24:25], s[0:1], 72")
o(f"  s_cmp_ge_u32 s2, {PW}")
o("  s_cbranch_scc1 K1_GEMM")

HIST = 0
OFFL = 1024
STG = 2048
o("  v_lshlrev_b32 v1, 4, v0")
o("  v_lshlrev_b32 v2, 3, v0")
o("  v_lshlrev_b32 v3, 2, v0")
o("  v_mov_b32 v4, 0")
o(f"  ds_write_b32 v3, v4 offset:{HIST}")
o(f"  s_mul_i32 s50, s2, {CH*4}")
o(f"  s_mul_i32 s54, s2, {CH*2}")
o(f"  s_add_u32 s51, s50, 6400")
o(f"  s_add_u32 s55, s54, 3200")
o("  s_mov_b32 s58, 21400")
o("  s_mov_b32 s59, -49")
o("  v_cmp_gt_u32 vcc, 400, v0")
o("  s_waitcnt lgkmcnt(0)")
srd(28, 14, 15, E*4)
srd(32, 12, 13, E*4)
srd(36, 10, 11, E*2)
o("  s_and_saveexec_b64 s[62:63], vcc")
o("  s_cbranch_execz K1_P_L0")
vD, vS, vE = 8, 16, 24
for r in range(2):
    o(f"  buffer_load_dwordx4 v[{vD+4*r}:{vD+4*r+3}], v1, s[28:31], s{50+r} offen")
for r in range(2):
    o(f"  buffer_load_dwordx4 v[{vS+4*r}:{vS+4*r+3}], v1, s[32:35], s{50+r} offen")
for r in range(2):
    o(f"  buffer_load_dwordx2 v[{vE+2*r}:{vE+2*r+1}], v2, s[36:39], s{54+r} offen")
o("K1_P_L0:")
o(f"  s_mul_i32 s60, s2, {CH*8}")
o(f"  s_add_u32 s60, s60, {REC_OFF}")
o("  s_add_u32 s40, s24, s60")
o("  s_addc_u32 s41, s25, 0")
o("  s_and_b32 s41, s41, 0xffff")
o(f"  s_mov_b32 s42, {CH*8}")
o("  s_mov_b32 s43, 0x00020000")
srd_off(44, 24, 25, OFFT_OFF, 257*1024)
o("  v_mov_b32 v5, 1")
o("  s_mov_b32 s61, 0xffff0000")
o("  s_barrier")
vA, vR, vL = 28, 36, 44
o("  s_waitcnt vmcnt(4)")
stamp(1)
for k in range(8):
    o(f"  v_mul_u32_u24 v6, s58, v{vD+k}")
    o(f"  v_lshrrev_b32 v6, 20, v6")
    o(f"  v_mad_i32_i24 v{vL+2*k+1}, v6, s59, v{vD+k}")
    o(f"  v_and_b32 v7, 7, v6")
    o(f"  v_lshrrev_b32 v6, 3, v6")
    o(f"  v_lshl_or_b32 v6, v7, 5, v6")
    o(f"  v_lshlrev_b32 v{vA+k}, 2, v6")
    o(f"  ds_add_rtn_u32 v{vR+k}, v{vA+k}, v5 offset:{HIST}")
o("  s_waitcnt lgkmcnt(0)")
o("  s_barrier")
stamp(2)
o("  s_waitcnt vmcnt(0)")
for k in range(8):
    r, j = k >> 2, k & 3
    ereg = vE + 2*r + (j >> 1)
    if j & 1 == 0:
        o(f"  v_lshl_or_b32 v{vL+2*k}, v{ereg}, 16, v{vS+k}")
    else:
        o(f"  v_and_or_b32 v{vL+2*k}, v{ereg}, s61, v{vS+k}")
o("  s_mov_b64 exec, s[62:63]")
o("  v_cmp_gt_u32 vcc, 64, v0")
o("  s_and_saveexec_b64 s[64:65], vcc")
o("  s_cbranch_execz K1_P_SCANDONE")
o(f"  ds_read_b128 v[60:63], v1 offset:{HIST}")
o("  s_waitcnt lgkmcnt(0)")
o("  v_add_u32 v65, v60, v61")
o("  v_add_u32 v66, v65, v62")
o("  v_add_u32 v67, v66, v63")
o("  v_mov_b32 v68, v67")
wave_scan(68)
o("  v_sub_u32 v68, v68, v67")
o("  v_add_u32 v69, v68, v60")
o("  v_add_u32 v70, v68, v65")
o("  v_add_u32 v71, v68, v66")
o(f"  ds_write_b128 v1, v[68:71] offset:{OFFL}")
o("  v_lshlrev_b32 v64, 12, v0")
o("  s_lshl_b32 s66, s2, 2")
for j in range(4):
    o(f"  buffer_store_dword v{68+j}, v64, s[44:47], s66 offen offset:{j*1024}")
o(f"  v_mov_b32 v72, {CH}")
o(f"  v_mov_b32 v73, {256*1024}")
o("  buffer_store_dword v72, v73, s[44:47], s66 offen")
o("K1_P_SCANDONE:")
o("  s_mov_b64 exec, s[64:65]")
o("  v_cmp_gt_u32 vcc, 400, v0")
o("  s_and_saveexec_b64 s[62:63], vcc")
o("  s_waitcnt lgkmcnt(0)")
o("  s_barrier")
stamp(3)
for k in range(8):
    o(f"  ds_read_b32 v{vD+k}, v{vA+k} offset:{OFFL}")
o("  s_waitcnt lgkmcnt(0)")
for k in range(8):
    o(f"  v_add_u32 v6, v{vD+k}, v{vR+k}")
    o(f"  v_lshlrev_b32 v6, 3, v6")
    o(f"  ds_write_b64 v6, v[{vL+2*k}:{vL+2*k+1}] offset:{STG}")
o("  s_mov_b64 exec, s[62:63]")
o("  s_waitcnt lgkmcnt(0)")
o("  s_barrier")
stamp(4)
for i in range(4):
    o(f"  ds_read_b128 v[{8+4*i}:{8+4*i+3}], v1 offset:{STG+8192*i}")
o("  v_add_u32 v2, 0x2000, v1")
o("  v_add_u32 v3, 0x4000, v1")
o("  v_add_u32 v4, 0x6000, v1")
for i in range(4):
    o(f"  s_waitcnt lgkmcnt({3-i})")
    o(f"  buffer_store_dwordx4 v[{8+4*i}:{8+4*i+3}], v{1+i}, s[40:43], 0 offen")
if DBG:
    o("  s_waitcnt vmcnt(0)")
    stamp(5)
    o("  s_waitcnt lgkmcnt(0)")
    o("  s_cmp_lg_u32 s2, {}".format(7))
    o("  s_cbranch_scc1 K1_END")
    o("  v_cmp_eq_u32 vcc, 0, v0")
    o("  s_and_saveexec_b64 s[70:71], vcc")
    o("  s_cbranch_execz K1_END")
    o("  s_load_dwordx2 s[72:73], s[0:1], 64")
    o("  s_waitcnt lgkmcnt(0)")
    srd(76, 72, 73, 256)
    o("  v_mov_b32 v1, 0")
    for i in range(1, 5+1):
        o(f"  s_sub_u32 s73, s{80+2*i}, s80")
        o(f"  v_mov_b32 v2, s73")
        o(f"  buffer_store_dword v2, v1, s[76:79], 0 offen offset:{4*i}")
o("  s_endpgm")

o("K1_GEMM:")
o(f"  s_sub_u32 s3, s2, {PW}")
o("  v_lshrrev_b32 v1, 6, v0")
o("  s_nop 0")
o("  v_readfirstlane_b32 s5, v1")
o("  v_and_b32 v2, 63, v0")
o("  v_and_b32 v3, 31, v2")
o("  v_lshrrev_b32 v4, 5, v2")
o("  v_lshlrev_b32 v10, 4, v0")
o("  s_and_b32 s6, s5, 1")
o("  s_lshr_b32 s26, s5, 1")
o("  s_lshl_b32 s4, s3, 2")
o("  s_add_u32 s4, s4, s26")
o("  s_lshl_b32 s4, s4, 5")
o("  s_waitcnt lgkmcnt(0)")
srd(28, 20, 21, 128*128)
srd(32, 18, 19, 8192)
srd(36, 8, 9, N*128)
XF = 16
WT = 32
WF = 48
AC = 80
o("  s_mov_b32 s26, 8192")
o(f"  buffer_load_dwordx4 v[{WT}:{WT+3}], v10, s[28:31], s26 offen")
o(f"  buffer_load_dwordx4 v[{WT+4}:{WT+7}], v10, s[32:35], 0 offen")
o("  v_add_u32 v7, s4, v3")
o("  v_lshlrev_b32 v7, 7, v7")
o("  v_lshl_add_u32 v7, v4, 4, v7")
for ks in range(4):
    o(f"  buffer_load_dwordx4 v[{XF+ks*4}:{XF+ks*4+3}], v7, s[36:39], 0 offen offset:{ks*32}")
srd_off(40, 24, 25, T_OFF, ROWS*256)
o("  v_lshlrev_b32 v5, 10, v4")
o("  v_bfe_u32 v6, v2, 2, 2")
o("  v_lshl_add_u32 v5, v6, 7, v5")
o("  v_bfe_u32 v6, v2, 4, 1")
o("  v_lshl_add_u32 v5, v6, 5, v5")
o("  v_and_b32 v6, 3, v2")
o("  v_lshl_add_u32 v5, v6, 3, v5")
o("  s_lshl_b32 s26, s6, 6")
o("  v_add_u32 v5, s26, v5")
for i in range(32):
    o(f"  v_mov_b32 v{AC+i}, 0")
o("  v_lshl_add_u32 v9, v4, 2, s4")
o("  v_lshlrev_b32 v9, 8, v9")
o("  v_lshl_add_u32 v9, v3, 2, v9")
o("  s_lshl_b32 s26, s6, 7")
o("  v_add_u32 v9, s26, v9")
for q in range(4):
    o(f"  s_mov_b32 s{64+q}, {(8*q)*256}")
o("  v_mov_b32 v12, 0x477fe000")
o("  v_mov_b32 v11, 0xc77fe000")
o("  s_waitcnt vmcnt(4)")
for idx, off in enumerate((0, 8192)):
    o(f"  ds_write_b128 v10, v[{WT+4*idx}:{WT+4*idx+3}] offset:{off}")
o("  s_waitcnt lgkmcnt(0)")
o("  s_barrier")
for m in range(2):
    for ks in range(4):
        for h in range(2):
            f = WF+m*16+ks*4+2*h
            o(f"  ds_read_b64_tr_b16 v[{f}:{f+1}], v5 offset:{m*8192 + ks*2048 + h*512}")
o("  s_waitcnt vmcnt(0) lgkmcnt(0)")
stamp(1)
for m in range(2):
    for ks in range(4):
        a = XF+ks*4
        b = WF+m*16+ks*4
        c = AC+m*16
        o(f"  v_mfma_f32_32x32x16_bf16 v[{c}:{c+15}], v[{a}:{a+3}], v[{b}:{b+3}], v[{c}:{c+15}]")
o("  s_nop 15")
o("  s_nop 3")
stamp(2)
for i in range(16):
    a1 = AC+i
    a2 = AC+16+i
    o(f"  v_mul_f32 v13, {NLOG2E:#x}, v{a1}")
    o(f"  v_med3_f32 v13, v13, v11, v12")
    o(f"  v_cvt_f16_f32 v13, v13")
    o(f"  v_and_b32 v13, 0xffff, v13")
    o(f"  v_and_b32 v14, 0x7fffffff, v{a2}")
    o(f"  v_and_b32 v15, 0x80000000, v{a2}")
    o(f"  v_sub_u32 v14, v14, v13")
    o(f"  v_add_u32 v14, 0x8000, v14")
    o(f"  v_max_i32 v14, 0, v14")
    o(f"  v_min_i32 v14, 0x7f7fffff, v14")
    o(f"  v_and_b32 v14, 0xffff0000, v14")
    o(f"  v_or3_b32 v{a1}, v14, v15, v13")
    o(f"  buffer_store_dword v{a1}, v9, s[40:43], s{64+(i>>2)} offen offset:{(i&3)*256}")
if DBG:
    o("  s_waitcnt vmcnt(0)")
    stamp(3)
    o("  s_waitcnt lgkmcnt(0)")
    o("  s_cmp_lg_u32 s2, {}".format(PW+7))
    o("  s_cbranch_scc1 K1_END")
    o("  v_cmp_eq_u32 vcc, 0, v0")
    o("  s_and_saveexec_b64 s[70:71], vcc")
    o("  s_cbranch_execz K1_END")
    o("  s_load_dwordx2 s[72:73], s[0:1], 64")
    o("  s_waitcnt lgkmcnt(0)")
    srd(76, 72, 73, 256)
    o("  v_mov_b32 v1, 64")
    for i in range(1, 3+1):
        o(f"  s_sub_u32 s73, s{80+2*i}, s80")
        o(f"  v_mov_b32 v2, s73")
        o(f"  buffer_store_dword v2, v1, s[76:79], 0 offen offset:{4*i}")
o("K1_END:")
o("  s_endpgm")

L_HIST = 0
L_GOFF = 256
L_MISC = 512
L_HN = 576
L_HEAD = 1024
L_ACC = L_HEAD + 16*256
L_A = L_ACC + BN*256
L_U = L_A + 64*256
L_SORT = L_U + 64*256
L_X = 150 * 1024
L_W = L_HEAD
NIT = KSEG // 4
o(".globl mpnn_k2_kernel")
o(".p2align 8")
o(".type mpnn_k2_kernel,@function")
o("mpnn_k2_kernel:")
o(f"  s_cmp_ge_u32 s2, {NB}")
o("  s_cbranch_scc1 K2_END")
stamp(0)
o("  s_load_dwordx4 s[8:11], s[0:1], 48")
o("  s_load_dwordx2 s[12:13], s[0:1], 64")
o("  s_load_dwordx2 s[14:15], s[0:1], 32")
o("  s_load_dwordx2 s[16:17], s[0:1], 0")
o("  s_load_dwordx2 s[24:25], s[0:1], 72")
o("  v_lshrrev_b32 v1, 6, v0")
o("  v_and_b32 v2, 63, v0")
o("  v_readfirstlane_b32 s5, v1")
o("  v_lshlrev_b32 v3, 4, v0")
o("  v_lshrrev_b32 v4, 3, v0")
o("  v_and_b32 v5, 7, v0")
o("  v_lshlrev_b32 v5, 1, v5")
o("  v_and_b32 v6, 15, v2")
o("  v_lshlrev_b32 v6, 4, v6")
o("  v_lshlrev_b32 v7, 2, v4")
o("  s_and_b32 s7, s2, 7")
o("  s_lshl_b32 s7, s7, 5")
o("  s_lshr_b32 s58, s2, 3")
o("  s_or_b32 s7, s7, s58")
o("  s_lshl_b32 s7, s7, 10")
o(f"  s_mul_i32 s6, s2, {BN*256}")
o("  s_waitcnt lgkmcnt(0)")
srd(48, 8, 9, 129*128)
srd(44, 14, 15, 8192)
srd(40, 16, 17, N*128)
srd_off(28, 24, 25, OFFT_OFF, 257*1024)
o("  buffer_load_dword v8, v7, s[28:31], s7 offen")
o("  buffer_load_dword v9, v7, s[28:31], s7 offen offset:1024")
o("  buffer_load_dword v24, v7, s[28:31], s7 offen offset:512")
o("  buffer_load_dword v25, v7, s[28:31], s7 offen offset:1536")
srd_off(32, 24, 25, REC_OFF, PW*CH*8)
srd_off(36, 24, 25, T_OFF, ROWS)
o("  s_or_b32 s37, s37, 0x01000000")
srd(52, 10, 11, N*128)
o("  v_mov_b32 v120, 0")
o("  v_mov_b32 v121, 0")
o("  v_mov_b32 v122, 0")
o("  v_mov_b32 v123, 0")
o("  s_cmp_lg_u32 s5, 0")
o("  s_cbranch_scc1 K2_Z2")
o(f"  ds_write_b128 v3, v[120:123] offset:0")
o("K2_Z2:")
o("  v_lshrrev_b32 v10, 4, v2")
o("  v_and_b32 v11, 1, v10")
o("  v_lshlrev_b32 v11, 3, v11")
o("  v_lshrrev_b32 v10, 1, v10")
o("  v_lshl_add_u32 v11, v10, 2, v11")
o("  v_add_u32 v36, v11, v6")
o("  v_mov_b32 v27, 1")
o("  v_mov_b32 v32, 0x3c00")
o("  s_mov_b32 s60, 0")
o(f"  v_mov_b32 v11, {CH*8}")
o("  v_add_u32 v10, 128, v4")
o("  s_waitcnt vmcnt(0)")
stamp(1)
o("  v_sub_u32 v9, v9, v8")
o("  v_sub_u32 v25, v25, v24")
o(f"  v_cmp_gt_u32 vcc, {PW}, v10")
o("  v_add_u32 v8, v8, v5")
o("  v_add_u32 v24, v24, v5")
o("  v_cndmask_b32 v25, 0, v25, vcc")
o(f"  v_min_u32 v9, {CH}, v9")
o(f"  v_min_u32 v25, {CH}, v25")
o("  v_lshlrev_b32 v8, 3, v8")
o("  v_lshlrev_b32 v24, 3, v24")
o("  v_mad_u32_u24 v8, v4, v11, v8")
o("  v_mad_u32_u24 v24, v10, v11, v24")
o("  v_max_u32 v23, v9, v25")
o("  v_sub_u32 v26, v9, v5")
o("  v_sub_u32 v25, v25, v5")
RL = 40
RK = 64
REM = (26, 25)
ADR = (8, 24)
NI = KSEG // 16
o("K2_ROUND:")
for p in range(2):
    for it in range(NI):
        q = p*NI + it
        o(f"  v_cmpx_lt_i32 vcc, {16*it}, v{REM[p]}")
        o(f"  s_cbranch_execz K2_LD_DONE{p}")
        o(f"  buffer_load_dwordx4 v[{RL+4*q}:{RL+4*q+3}], v{ADR[p]}, s[32:35], 0 offen offset:{128*it}")
    o(f"K2_LD_DONE{p}:")
    o("  s_mov_b64 exec, -1")
o("  s_cmp_lg_u32 s60, 0")
o("  s_cbranch_scc1 K2_SETUP_SKIP")
o("  v_lshrrev_b32 v10, 1, v6")
o(f"  v_add_u32 v10, {128*128}, v10")
o("  buffer_load_dwordx2 v[20:21], v10, s[48:51], 0 offen")
o("  v_and_b32 v10, 0x1ff0, v3")
o("  s_cmp_ge_u32 s5, 8")
o("  s_cbranch_scc1 K2_W1")
o("  buffer_load_dwordx4 v[12:15], v10, s[48:51], 0 offen")
o(f"  s_mul_i32 s59, s2, {BN*128}")
o("  buffer_load_dwordx4 v[88:91], v3, s[40:43], s59 offen")
o("  s_waitcnt lgkmcnt(0)")
o("  s_barrier")
stamp(7)
o("  s_waitcnt vmcnt(3)")
o("  s_branch K2_W2")
o("K2_W1:")
o("  buffer_load_dwordx4 v[12:15], v10, s[44:47], 0 offen")
o("  s_waitcnt lgkmcnt(0)")
o("  s_barrier")
stamp(7)
o("  s_waitcnt vmcnt(2)")
o("K2_W2:")
o(f"  v_mov_b32 v11, {L_MISC}")
o("  ds_max_u32 v11, v23")
o("  s_branch K2_SETUP_DONE")
o("K2_SETUP_SKIP:")
o("  s_waitcnt lgkmcnt(0)")
o("  s_barrier")
o("  s_waitcnt vmcnt(0)")
o("K2_SETUP_DONE:")
stamp(2)
def rec_loop(tag, body):
    for p in range(2):
        for it in range(NI):
            for h in range(2):
                q = p*NI + it
                o(f"  v_cmpx_lt_i32 vcc, {16*it+h}, v{REM[p]}")
                o(f"  s_cbranch_execz K2_{tag}_DONE{p}")
                body(RL+4*q+2*h, 2*q+h)
        o(f"K2_{tag}_DONE{p}:")
        o("  s_mov_b64 exec, -1")
def b_at(r, i):
    o(f"  v_lshlrev_b32 v{r+1}, 2, v{r+1}")
    o(f"  ds_add_rtn_u32 v{RK+i}, v{r+1}, v27 offset:{L_HIST}")
rec_loop("AT", b_at)
o("  s_cmp_lg_u32 s60, 0")
o("  s_cbranch_scc1 K2_WST_SKIP")
o("  s_waitcnt vmcnt(0)")
o(f"  ds_write_b128 v3, v[12:15] offset:{L_W}")
o("  s_cmp_ge_u32 s5, 8")
o("  s_cbranch_scc1 K2_XST")
o("  v_lshrrev_b32 v10, 3, v0")
o("  v_lshl_add_u32 v10, v10, 4, v3")
o(f"  v_add_u32 v10, {L_X}, v10")
o("  ds_write_b128 v10, v[88:91]")
o("K2_XST:")
o("  v_lshlrev_b32 v28, 16, v20")
o("  v_and_b32 v29, 0xffff0000, v20")
o("  v_lshlrev_b32 v30, 16, v21")
o("  v_and_b32 v31, 0xffff0000, v21")
for j in range(4):
    o(f"  v_mul_f32 v{28+j}, {NLOG2E:#x}, v{28+j}")
o("K2_WST_SKIP:")
o("  s_waitcnt lgkmcnt(0)")
o("  s_barrier")
stamp(8)
o("  s_cmp_lg_u32 s60, 0")
o("  s_cbranch_scc1 K2_PF_SKIP")
o("  s_lshr_b32 s58, s2, 3")
o(f"  s_mul_i32 s58, s58, {392*256}")
for i in range(7 if EXP == "prefetch" else 0):
    o(f"  buffer_load_dwordx4 v[104:107], v3, s[36:39], s58 offen")
    o(f"  s_add_u32 s58, s58, 16384")

o("K2_PF_SKIP:")
o("  v_lshlrev_b32 v11, 2, v2")
o(f"  ds_read_b32 v37, v11 offset:{L_HIST}")
o(f"  v_cmp_gt_u32 s[56:57], {BN}, v2")
o("  s_waitcnt lgkmcnt(0)")
o("  v_add_u32 v34, 3, v37")
o("  v_and_b32 v34, -4, v34")
o("  v_max_u32 v34, 4, v34")
o("  v_cndmask_b32 v34, 0, v34, s[56:57]")
o("  v_mov_b32 v35, v34")
wave_scan(35)
o("  v_readlane_b32 s61, v35, 63")
o("  v_sub_u32 v35, v35, v34")
o("  s_add_u32 s62, s61, 15")
o("  s_and_b32 s62, s62, -16")
o("  v_mov_b32 v33, s62")
o("  s_nop 1")
o("  v_cndmask_b32 v33, v33, v35, s[56:57]")
o("  s_cmp_lg_u32 s5, 0")
o("  s_cbranch_scc1 K2_PAD_DONE")
o(f"  v_mov_b32 v38, {N}")
o("  v_mov_b32 v39, 0")
o("  v_add_u32 v10, v35, v37")
o("  v_lshlrev_b32 v10, 3, v10")
o("  v_sub_u32 v34, v34, v37")
for j in range(4):
    o(f"  v_cmpx_lt_u32 vcc, {j}, v34")
    o(f"  ds_write_b64 v10, v[38:39] offset:{L_SORT+8*j}")
o("  s_mov_b64 exec, -1")
o("  v_add_u32 v10, s61, v2")
o("  v_lshlrev_b32 v10, 3, v10")
o("  v_cmpx_gt_u32 vcc, 16, v2")
o(f"  ds_write_b64 v10, v[38:39] offset:{L_SORT}")
o("  s_mov_b64 exec, -1")
o("K2_PAD_DONE:")
for p in range(2):
    for it in range(NI):
        for h in range(2):
            q = p*NI + it
            r = RL+4*q+2*h
            o(f"  v_cmp_lt_i32 vcc, {16*it+h}, v{REM[p]}")
            o(f"  s_cbranch_vccz K2_SC1_DONE{p}")
            o(f"  ds_bpermute_b32 v{76+2*q+h}, v{r+1}, v33")
    o(f"K2_SC1_DONE{p}:")
o("  s_waitcnt lgkmcnt(0)")
def b_wr(r, i):
    o(f"  v_add_u32 v11, v{76+i}, v{RK+i}")
    o(f"  v_lshlrev_b32 v11, 3, v11")
    o(f"  v_and_b32 v{r+1}, 0xffff0000, v{r}")
    o(f"  v_and_b32 v{r}, 0x3fff, v{r}")
    o(f"  ds_write_b64 v11, v[{r}:{r+1}] offset:{L_SORT}")
rec_loop("SC2", b_wr)
stamp(9)
o("  v_readlane_b32 s62, v33, 49")
o("  s_lshr_b32 s63, s62, 2")
o("  s_mul_i32 s64, s63, s5")
o("  s_lshr_b32 s64, s64, 4")
o("  s_add_u32 s65, s5, 1")
o("  s_mul_i32 s65, s63, s65")
o("  s_lshr_b32 s65, s65, 4")
o("  s_lshl_b32 s66, s64, 2")
o("  s_lshl_b32 s67, s65, 2")
o(f"  v_cmp_gt_u32 s[56:57], {BN}, v2")
o("  v_cmp_ge_u32 vcc, s66, v33")
o("  s_and_b64 vcc, vcc, s[56:57]")
o("  s_bcnt1_i32_b64 s68, vcc")
o("  s_sub_u32 s68, s68, 1")
o("  s_add_u32 s69, s68, 1")
o("  v_readlane_b32 s70, v33, s69")
o("  v_readlane_b32 s72, v33, s68")
o("  s_cmp_lg_u32 s72, s66")
o("  s_cselect_b32 s73, 1, 0")
o("  s_cmp_ge_u32 s64, s65")
o("  s_cselect_b32 s73, 0, s73")
o("  s_cmp_lg_u32 s73, 0")
o("  s_cselect_b32 s74, s68, -1")
o("  v_mov_b32 v11, s74")
o("  s_lshl_b32 s74, s5, 2")
o("  v_mov_b32 v10, s74")
o(f"  ds_write_b32 v10, v11 offset:{L_HN}")
o("  s_waitcnt lgkmcnt(0)")
o("  s_barrier")
stamp(3)
if DBG:
    pass
AV = 40
AC2 = 44
RB = 48
EBL = [12,13,14,15, 20,21,22,23, 4,5,9,10]
WB = 72
TT = 120
NBUF = int(os.environ.get("NBUF","2"))
VRA = 34
VAA = 35
VRB = 37
o("  v_lshrrev_b32 v11, 4, v2")
o("  v_lshlrev_b32 v11, 3, v11")
o("  s_lshl_b32 s71, s66, 3")
o(f"  v_add_u32 v{VRA}, s71, v11")
o("  v_mov_b32 v38, 1.0")
o("  v_mov_b32 v39, 1.0")
R = int(os.environ.get("RING","4"))
for i in range(R):
    o(f"  v_mov_b32 v{RB+2*i+1}, v6")
def issue1(j, ahead, off):
    o(f"  s_add_u32 s78, s66, {4*ahead}")
    o("  s_cmp_lt_u32 s78, s67")
    o(f"  s_cselect_b32 s38, {ROWS}, 0")
    r = RB+2*j
    if EXP == "samerow":
        o(f"  v_mov_b32 v{r}, 0")
    o(f"  buffer_load_dwordx4 v[{WB+4*j}:{WB+4*j+3}], v[{r}:{r+1}], s[36:39], 0 idxen offen")
    o(f"  ds_read_b32 v{r}, v{VRB} offset:{L_SORT+off}")
uid = [0]
def compute1(i, off):
    e = EBL[i]
    ep, es = e & ~1, e & 1
    w = WB+4*i
    t = TT + (i & 1)*4
    o(f"  s_waitcnt vmcnt({R-1})")
    for j in (0, 2):
        o(f"  v_pk_fma_f32 v[{t+j}:{t+j+1}], v[{ep}:{ep+1}], v[{28+j}:{29+j}], v[{AV+j}:{AV+j+1}] op_sel:[{es},0,0] op_sel_hi:[{es},1,1]")
    o(f"  ds_read_b32 v{e}, v{VRA} offset:{L_SORT+off+4}")
    for j in range(4):
        o(f"  v_dot2_f32_f16 v{t+j}, v{w+j}, v32, v{t+j}")
    for j in range(4):
        o(f"  v_exp_f32 v{t+j}, v{t+j}")
    o("  s_add_u32 s66, s66, 4")
    for j in (0, 2):
        o(f"  v_pk_add_f32 v[{t+j}:{t+j+1}], v[{t+j}:{t+j+1}], v[38:39]")
    for j in range(4):
        o(f"  v_rcp_f32 v{t+j}, v{t+j}")
    o("  s_cmp_lg_u32 s66, s70")
    for j in (0, 2):
        o(f"  v_pk_fma_f32 v[{AC2+j}:{AC2+j+1}], v[{t+j}:{t+j+1}], v[{w+j}:{w+j+1}], v[{AC2+j}:{AC2+j+1}]")
    uid[0] += 1
    u = uid[0]
    o(f"  s_cbranch_scc1 K2_NF{u}")
    o("  s_getpc_b64 s[76:77]")
    o("  s_add_u32 s76, s76, 12")
    o("  s_addc_u32 s77, s77, 0")
    o("  s_branch K2_FLUSH")
    o(f"K2_NF{u}:")
for i in range(R):
    o(f"  ds_read_b32 v{RB+2*i}, v{VRA} offset:{L_SORT+32*i}")
    o(f"  ds_read_b32 v{EBL[i]}, v{VRA} offset:{L_SORT+32*i+4}")
o(f"  v_add_u32 v{VRA}, {32*R}, v{VRA}")
o(f"  v_mov_b32 v{VRB}, v{VRA}")
o("  s_waitcnt lgkmcnt(0)")
for i in range(R-1):
    issue1(i, i, 32*i)
o(f"  v_add_u32 v{VRB}, {32*(R-1)}, v{VRB}")
o("  s_cmp_lg_u32 s60, 0")
o("  s_cbranch_scc1 K2_MM_SKIP")
o("  s_cmp_ge_u32 s5, 8")
o("  s_cbranch_scc1 K2_MM_DONE")
ACM = 104
o("  v_lshrrev_b32 v1, 5, v2")
o("  v_lshlrev_b32 v7, 10, v1")
o("  v_bfe_u32 v11, v2, 2, 2")
o("  v_lshl_add_u32 v7, v11, 7, v7")
o("  v_bfe_u32 v11, v2, 4, 1")
o("  v_lshl_add_u32 v7, v11, 5, v7")
o("  v_and_b32 v11, 3, v2")
o("  v_lshl_add_u32 v7, v11, 3, v7")
o("  s_and_b32 s58, s5, 1")
o("  s_bfe_u32 s59, s5, 0x10001")
o("  s_lshl_b32 s78, s58, 6")
o("  s_lshl_b32 s79, s59, 13")
o("  s_add_u32 s78, s78, s79")
o("  v_add_u32 v7, s78, v7")
o("  s_lshr_b32 s78, s5, 2")
o(f"  s_mul_i32 s78, s78, {32*144}")
o(f"  s_add_u32 s78, s78, {L_X}")
o("  v_and_b32 v11, 31, v2")
o("  v_mul_u32_u24 v11, 144, v11")
o("  v_lshl_add_u32 v11, v1, 4, v11")
o("  v_add_u32 v11, s78, v11")
for i in range(16):
    o(f"  v_mov_b32 v{ACM+i}, 0")
for half in range(2):
    for k2 in range(2):
        ks = half*2 + k2
        for h in range(2):
            f = 40+k2*4+2*h
            o(f"  ds_read_b64_tr_b16 v[{f}:{f+1}], v7 offset:{L_W + ks*2048 + h*512}")
        o(f"  ds_read_b128 v[{120+k2*4}:{123+k2*4}], v11 offset:{ks*32}")
    o("  s_waitcnt lgkmcnt(0)")
    for k2 in range(2):
        o(f"  v_mfma_f32_32x32x16_bf16 v[{ACM}:{ACM+15}], v[{120+k2*4}:{123+k2*4}], v[{40+k2*4}:{43+k2*4}], v[{ACM}:{ACM+15}]")
    o("  s_nop 7")
o("  s_lshr_b32 s78, s5, 2")
o("  s_lshl_b32 s78, s78, 13")
o("  s_lshl_b32 s79, s58, 7")
o("  s_add_u32 s78, s78, s79")
o("  s_lshl_b32 s79, s59, 14")
o("  s_add_u32 s78, s78, s79")
o("  v_lshlrev_b32 v7, 10, v1")
o("  v_and_b32 v11, 31, v2")
o("  v_lshl_add_u32 v7, v11, 2, v7")
o("  v_add_u32 v7, s78, v7")
o(f"  s_cmp_eq_u32 s59, 0")
o(f"  s_cselect_b32 s79, {NLOG2E:#x}, 1.0")
o("  v_mov_b32 v11, s79")
o("  s_nop 7")
for i in range(16):
    o(f"  v_mul_f32 v{ACM+i}, v{ACM+i}, v11")
    o(f"  ds_write_b32 v7, v{ACM+i} offset:{L_A + ((i&3) + 8*(i>>2))*256}")
o("K2_MM_DONE:")
o("  s_waitcnt lgkmcnt(0)")
o("  s_barrier")
o("K2_MM_SKIP:")
o("  s_cmp_ge_u32 s64, s65")
o("  s_cbranch_scc1 K2_NOFINAL")
o("  s_lshl_b32 s71, s68, 8")
o(f"  v_add_u32 v{VAA}, s71, v6")
o(f"  ds_read_b128 v[{AV}:{AV+3}], v{VAA} offset:{L_A}")
for j in range(4):
    o(f"  v_mov_b32 v{AC2+j}, 0")
o("  s_setprio 3")
pid = [0]
def prio_update():
    if not PRIO:
        return
    pid[0] += 1
    u = pid[0]
    o("  s_sub_u32 s78, s67, s66")
    o(f"  s_cmp_gt_u32 s78, {16*P3}")
    o(f"  s_cbranch_scc1 K2_PD{u}")
    o(f"  s_cmp_gt_u32 s78, {16*P2}")
    o(f"  s_cbranch_scc1 K2_PA{u}")
    o(f"  s_cmp_gt_u32 s78, {16*P1}")
    o(f"  s_cbranch_scc1 K2_PB{u}")
    o("  s_setprio 0")
    o(f"  s_branch K2_PD{u}")
    o(f"K2_PA{u}:")
    o("  s_setprio 2")
    o(f"  s_branch K2_PD{u}")
    o(f"K2_PB{u}:")
    o("  s_setprio 1")
    o(f"K2_PD{u}:")
o("  s_waitcnt lgkmcnt(0)")
o("K2_LOOP:")
for i in range(R):
    o("  s_waitcnt lgkmcnt(2)")
    issue1((i - 1) % R, R-1, 32*i)
    compute1(i, 32*i)
    o("  s_cmp_ge_u32 s66, s67")
    o("  s_cbranch_scc1 K2_LOOP_EXIT")
o(f"  v_add_u32 v{VRA}, {32*R}, v{VRA}")
o(f"  v_add_u32 v{VRB}, {32*R}, v{VRB}")
prio_update()
o("  s_branch K2_LOOP")
o("K2_LOOP_EXIT:")
o("  s_setprio 0")
o("  v_readlane_b32 s72, v33, s68")
o("  s_cmp_ge_u32 s72, s67")
o("  s_cbranch_scc1 K2_NOFINAL")
o("  s_getpc_b64 s[76:77]")
o("  s_add_u32 s76, s76, 12")
o("  s_addc_u32 s77, s77, 0")
o("  s_branch K2_FLUSH")
o("K2_NOFINAL:")
o("  s_waitcnt vmcnt(0) lgkmcnt(0)")
o("K2_MAIN_DONE:")
stamp(4)
o(f"  v_mov_b32 v11, {L_MISC}")
o("  ds_read_b32 v34, v11")
o("  s_barrier")
o("  v_lshlrev_b32 v10, 2, v2")
o(f"  ds_read_b32 v35, v10 offset:{L_HN}")
o(f"  ds_read_b32 v11, v10 offset:{L_HN-4}")
o("  s_lshl_b32 s71, s5, 8")
o("  v_add_u32 v20, s71, v36")
o(f"  ds_read_b32 v21, v20 offset:{L_HEAD}")
o("  s_waitcnt lgkmcnt(0)")
o("  v_readfirstlane_b32 s61, v34")
o(f"  s_min_u32 s61, s61, {CH}")
o("  v_cmp_eq_u32 vcc, v35, v11")
o("  v_cmp_ne_u32 s[56:57], -1, v35")
o("  s_and_b64 vcc, vcc, s[56:57]")
o("  s_and_b32 s72, vcc_lo, 0xfffe")
o("  s_cmp_lg_u32 s72, 0")
o("  s_cbranch_scc1 K2_CB_SLOW")
o("  s_cmp_lt_u32 s63, 16")
o("  s_cbranch_scc1 K2_CB_SLOW")
o("  v_readlane_b32 s72, v35, s5")
o("  s_cmp_eq_u32 s72, -1")
o("  s_cbranch_scc1 K2_CB_F1")
o("  s_lshl_b32 s72, s72, 8")
o("  v_add_u32 v20, s72, v36")
o(f"  ds_read_b32 v22, v20 offset:{L_ACC}")
o("  s_waitcnt lgkmcnt(0)")
o("  v_add_f32 v22, v22, v21")
o(f"  ds_write_b32 v20, v22 offset:{L_ACC}")
o("  s_waitcnt lgkmcnt(0)")
o("K2_CB_F1:")
o("  s_barrier")
o(f"  ds_read_b128 v[12:15], v3 offset:{L_ACC}")
o(f"  ds_read_b128 v[16:19], v3 offset:{L_U}")
o("  s_waitcnt lgkmcnt(0)")
o("  s_branch K2_CB_DONE")
o("K2_CB_SLOW:")
o(f"  ds_read_b128 v[12:15], v3 offset:{L_ACC}")
o(f"  ds_read_b128 v[16:19], v3 offset:{L_U}")
o("  v_lshrrev_b32 v10, 4, v0")
o("  s_waitcnt lgkmcnt(0)")
for w in range(16):
    o(f"  v_readlane_b32 s72, v35, {w}")
    o("  s_nop 1")
    o("  v_cmpx_eq_u32 vcc, s72, v10")
    o(f"  s_cbranch_execz K2_CB{w}")
    o(f"  ds_read_b128 v[20:23], v6 offset:{L_HEAD+256*w}")
    o("  s_waitcnt lgkmcnt(0)")
    for j in range(4):
        o(f"  v_add_f32 v{12+j}, v{12+j}, v{20+j}")
    o(f"K2_CB{w}:")
    o("  s_mov_b64 exec, -1")
o("K2_CB_DONE:")
o(f"  s_add_u32 s60, s60, {KSEG}")
o("  s_cmp_ge_u32 s60, s61")
o("  s_cbranch_scc1 K2_FINAL")
o("  v_cmp_gt_u32 vcc, 784, v0")
o("  s_and_saveexec_b64 s[56:57], vcc")
o("  s_cbranch_execz K2_NR0")
o(f"  ds_write_b128 v3, v[12:15] offset:{L_ACC}")
o("K2_NR0:")
o("  s_mov_b64 exec, s[56:57]")
o("  s_cmp_lg_u32 s5, 0")
o("  s_cbranch_scc1 K2_NR1")
o("  v_lshlrev_b32 v11, 2, v2")
o("  v_mov_b32 v34, 0")
o(f"  ds_write_b32 v11, v34 offset:{L_HIST}")
o("K2_NR1:")
o(f"  v_subrev_u32 v26, {KSEG}, v26")
o(f"  v_subrev_u32 v25, {KSEG}, v25")
o(f"  v_add_u32 v8, {KSEG*8}, v8")
o(f"  v_add_u32 v24, {KSEG*8}, v24")
o("  s_branch K2_ROUND")
o("K2_FINAL:")
stamp(5)
if DBG:
    pass
o("  v_cmp_gt_u32 vcc, 784, v0")
o("  s_and_saveexec_b64 s[56:57], vcc")
o("  s_cbranch_execz K2_FIN2")
o("  v_lshlrev_b32 v11, 3, v0")
o(f"  s_mul_i32 s6, s2, {BN*128}")
for j in range(4):
    o(f"  v_add_f32 v{12+j}, v{12+j}, v{16+j}")
for j in range(4):
    o(f"  v_mul_f32 v{20+j}, {NLOG2E:#x}, v{12+j}")
for j in range(4):
    o(f"  v_exp_f32 v{20+j}, v{20+j}")
for j in range(4):
    o(f"  v_add_f32 v{20+j}, 1.0, v{20+j}")
for j in range(4):
    o(f"  v_rcp_f32 v{20+j}, v{20+j}")
o("  s_nop 0")
for j in range(4):
    o(f"  v_mul_f32 v{12+j}, v{12+j}, v{20+j}")
o("  v_cvt_pk_bf16_f32 v12, v12, v13")
o("  v_cvt_pk_bf16_f32 v13, v14, v15")
o("  buffer_store_dwordx2 v[12:13], v11, s[52:55], s6 offen")
o("K2_FIN2:")
o("  s_mov_b64 exec, -1")
if DBG:
    stamp(6)
    o("  s_waitcnt lgkmcnt(0)")
    o("  s_cmp_lg_u32 s2, 5")
    o("  s_cbranch_scc1 K2_END")
    o("  s_lshl_b32 s72, s5, 4")
    srd(76, 12, 13, 256)
    o("  v_mov_b32 v1, s72")
    for n, i in enumerate(STAMPS):
        o(f"  s_sub_u32 s73, s{80+2*i}, s80")
        o(f"  v_mov_b32 v2, s73")
        o(f"  buffer_store_dword v2, v1, s[76:79], 0 offen offset:{4*n}")
o("K2_END:")
o("  s_endpgm")
o("K2_FLUSH:")
o("  s_nop 1")
o(f"  v_permlane32_swap_b32 v{AC2}, v{AC2+1}")
o(f"  v_permlane32_swap_b32 v{AC2+2}, v{AC2+3}")
o("  s_lshl_b32 s71, s68, 8")
o(f"  v_add_u32 v{VAA}, s71, v6")
o(f"  v_add_f32 v{AC2}, v{AC2}, v{AC2+1}")
o(f"  v_add_f32 v{AC2+2}, v{AC2+2}, v{AC2+3}")
o(f"  ds_read_b128 v[{AV}:{AV+3}], v{VAA} offset:{L_A+256}")
o(f"  v_add_u32 v{VAA}, s71, v36")
o(f"  v_permlane16_swap_b32 v{AC2}, v{AC2+2}")
o("  s_cmp_lg_u32 s73, 0")
o("  s_cbranch_scc1 K2_FL_HEAD")
o(f"  v_add_f32 v{AC2}, v{AC2}, v{AC2+2}")
o("  s_cmp_eq_u32 s60, 0")
o("  s_cbranch_scc1 K2_FL_W")
o(f"  ds_read_b32 v{AC2+1}, v{VAA} offset:{L_ACC}")
o("  s_waitcnt lgkmcnt(0)")
o(f"  v_add_f32 v{AC2}, v{AC2}, v{AC2+1}")
o("K2_FL_W:")
o(f"  ds_write_b32 v{VAA}, v{AC2} offset:{L_ACC}")
o("  s_branch K2_FL_C")
o("K2_FL_HEAD:")
o(f"  v_add_f32 v{AC2}, v{AC2}, v{AC2+2}")
o("  s_lshl_b32 s71, s5, 8")
o(f"  v_add_u32 v{VAA}, s71, v36")
o(f"  ds_write_b32 v{VAA}, v{AC2} offset:{L_HEAD}")
o("  s_mov_b32 s73, 0")
o("K2_FL_C:")
o("  s_add_u32 s68, s68, 1")
o("  s_add_u32 s69, s68, 1")
o("  v_readlane_b32 s70, v33, s69")
o("  s_waitcnt lgkmcnt(0)")
for j in range(4):
    o(f"  v_mov_b32 v{AC2+j}, 0")
o("  s_setpc_b64 s[76:77]")

o('.section .rodata,"a"')
for name, vg in (("mpnn_k1_kernel", 112), ("mpnn_k2_kernel", 128)):
    o(".p2align 6")
    o(f".amdhsa_kernel {name}")
    o(f"  .amdhsa_next_free_vgpr {vg}")
    o("  .amdhsa_next_free_sgpr 102")
    o(f"  .amdhsa_accum_offset {vg}")
    o("  .amdhsa_group_segment_fixed_size 0")
    o("  .amdhsa_kernarg_size 80")
    o("  .amdhsa_user_sgpr_count 2")
    o("  .amdhsa_user_sgpr_kernarg_segment_ptr 1")
    o("  .amdhsa_system_sgpr_workgroup_id_x 1")
    o(".end_amdhsa_kernel")

import re
_i = out.index("mpnn_k2_kernel:")
for _k in range(_i):
    if out[_k].lstrip().startswith("buffer_store_dword"):
        out[_k] += " sc1"
open(sys.argv[1] if len(sys.argv) > 1 else "standalone__edge_featured_mpnn_egc__graph.s", "w").write("\n".join(out) + "\n")
```

```python
import sys

N = 12500
E = 800000
NB = 256
BN = 49
PW = 250
CH = 3200
GW = 98
ROWS = 12544
KSEG = 48
T_OFF = 0
A_OFF = 4 << 20
U_OFF = 8 << 20
REC_OFF = 12 << 20
OFFT_OFF = 20 << 20
NLOG2E = 0xbfb8aa3b

import os
DBG = int(os.environ.get("DBG","0"))
EXP = os.environ.get("EXP","")
PRIO = int(os.environ.get("PRIO","1"))
STAMPS = [int(x) for x in os.environ.get("STAMPS","2,3,4,5").split(",")]
P1, P2, P3 = [int(x) for x in os.environ.get("PTH","1,3,6").split(",")]
out = []
def stamp(i):
    if DBG:
        o(f"  s_memtime s[{80+2*i}:{81+2*i}]")
def o(s=""):
    out.append(s)

def srd(d, lo, hi, size):
    o(f"  s_mov_b32 s{d}, s{lo}")
    o(f"  s_and_b32 s{d+1}, s{hi}, 0xffff")
    o(f"  s_mov_b32 s{d+2}, {size}")
    o(f"  s_mov_b32 s{d+3}, 0x00020000")

def srd_off(d, lo, hi, off, size):
    o(f"  s_add_u32 s{d}, s{lo}, {off}")
    o(f"  s_addc_u32 s{d+1}, s{hi}, 0")
    o(f"  s_and_b32 s{d+1}, s{d+1}, 0xffff")
    o(f"  s_mov_b32 s{d+2}, {size}")
    o(f"  s_mov_b32 s{d+3}, 0x00020000")

def wave_scan(v, tmp=None):
    for sh in (1, 2, 4, 8):
        o("  s_nop 1")
        o(f"  v_add_u32_dpp v{v}, v{v}, v{v} row_shr:{sh} row_mask:0xf bank_mask:0xf")
    o("  s_nop 1")
    o(f"  v_add_u32_dpp v{v}, v{v}, v{v} row_bcast:15 row_mask:0xa bank_mask:0xf")
    o("  s_nop 1")
    o(f"  v_add_u32_dpp v{v}, v{v}, v{v} row_bcast:31 row_mask:0xc bank_mask:0xf")
    o("  s_nop 1")

K2_LDS = 160 * 1024
K1_LDS = 36 * 1024
o(f"; @launch kernel=mpnn_k1_kernel grid=({PW+GW},1,1) block=(512,1,1) lds={K1_LDS}")
o(f"; @launch kernel=mpnn_k2_kernel grid=({NB},1,1) block=(1024,1,1) lds={K2_LDS}")
o('.amdgcn_target "amdgcn-amd-amdhsa--gfx950"')
o(".text")

o(".globl mpnn_k1_kernel")
o(".p2align 8")
o(".type mpnn_k1_kernel,@function")
o("mpnn_k1_kernel:")
o(f"  s_cmp_ge_u32 s2, {PW+GW}")
o("  s_cbranch_scc1 K1_END")
stamp(0)
if os.environ.get("GFIRST"):
    o(f"  s_add_u32 s3, s2, {PW}")
    o(f"  s_sub_u32 s4, s2, {GW}")
    o(f"  s_cmp_lt_u32 s2, {GW}")
    o("  s_cselect_b32 s2, s3, s4")
o("  s_load_dwordx8 s[8:15], s[0:1], 0")
o("  s_load_dwordx8 s[16:23], s[0:1], 32")
o("  s_load_dwordx2 s[24:25], s[0:1], 72")
o(f"  s_cmp_ge_u32 s2, {PW}")
o("  s_cbranch_scc1 K1_GEMM")

HIST = 0
OFFL = 1024
STG = 2048
o("  v_lshlrev_b32 v1, 4, v0")
o("  v_lshlrev_b32 v2, 3, v0")
o("  v_lshlrev_b32 v3, 2, v0")
o("  v_mov_b32 v4, 0")
o(f"  ds_write_b32 v3, v4 offset:{HIST}")
o(f"  s_mul_i32 s50, s2, {CH*4}")
o(f"  s_mul_i32 s54, s2, {CH*2}")
o(f"  s_add_u32 s51, s50, 6400")
o(f"  s_add_u32 s55, s54, 3200")
o("  s_mov_b32 s58, 21400")
o("  s_mov_b32 s59, -49")
o("  v_cmp_gt_u32 vcc, 400, v0")
o("  s_waitcnt lgkmcnt(0)")
srd(28, 14, 15, E*4)
srd(32, 12, 13, E*4)
srd(36, 10, 11, E*2)
o("  s_and_saveexec_b64 s[62:63], vcc")
o("  s_cbranch_execz K1_P_L0")
vD, vS, vE = 8, 16, 24
for r in range(2):
    o(f"  buffer_load_dwordx4 v[{vD+4*r}:{vD+4*r+3}], v1, s[28:31], s{50+r} offen")
for r in range(2):
    o(f"  buffer_load_dwordx4 v[{vS+4*r}:{vS+4*r+3}], v1, s[32:35], s{50+r} offen")
for r in range(2):
    o(f"  buffer_load_dwordx2 v[{vE+2*r}:{vE+2*r+1}], v2, s[36:39], s{54+r} offen")
o("K1_P_L0:")
o(f"  s_mul_i32 s60, s2, {CH*8}")
o(f"  s_add_u32 s60, s60, {REC_OFF}")
o("  s_add_u32 s40, s24, s60")
o("  s_addc_u32 s41, s25, 0")
o("  s_and_b32 s41, s41, 0xffff")
o(f"  s_mov_b32 s42, {CH*8}")
o("  s_mov_b32 s43, 0x00020000")
srd_off(44, 24, 25, OFFT_OFF, 257*1024)
o("  v_mov_b32 v5, 1")
o("  s_mov_b32 s61, 0xffff0000")
o("  s_barrier")
vA, vR, vL = 28, 36, 44
o("  s_waitcnt vmcnt(4)")
stamp(1)
for k in range(8):
    o(f"  v_mul_u32_u24 v6, s58, v{vD+k}")
    o(f"  v_lshrrev_b32 v6, 20, v6")
    o(f"  v_mad_i32_i24 v{vL+2*k+1}, v6, s59, v{vD+k}")
    o(f"  v_and_b32 v7, 7, v6")
    o(f"  v_lshrrev_b32 v6, 3, v6")
    o(f"  v_lshl_or_b32 v6, v7, 5, v6")
    o(f"  v_lshlrev_b32 v{vA+k}, 2, v6")
    o(f"  ds_add_rtn_u32 v{vR+k}, v{vA+k}, v5 offset:{HIST}")
o("  s_waitcnt lgkmcnt(0)")
o("  s_barrier")
stamp(2)
o("  s_waitcnt vmcnt(0)")
for k in range(8):
    r, j = k >> 2, k & 3
    ereg = vE + 2*r + (j >> 1)
    if j & 1 == 0:
        o(f"  v_lshl_or_b32 v{vL+2*k}, v{ereg}, 16, v{vS+k}")
    else:
        o(f"  v_and_or_b32 v{vL+2*k}, v{ereg}, s61, v{vS+k}")
o("  s_mov_b64 exec, s[62:63]")
o("  v_cmp_gt_u32 vcc, 64, v0")
o("  s_and_saveexec_b64 s[64:65], vcc")
o("  s_cbranch_execz K1_P_SCANDONE")
o(f"  ds_read_b128 v[60:63], v1 offset:{HIST}")
o("  s_waitcnt lgkmcnt(0)")
o("  v_add_u32 v65, v60, v61")
o("  v_add_u32 v66, v65, v62")
o("  v_add_u32 v67, v66, v63")
o("  v_mov_b32 v68, v67")
wave_scan(68)
o("  v_sub_u32 v68, v68, v67")
o("  v_add_u32 v69, v68, v60")
o("  v_add_u32 v70, v68, v65")
o("  v_add_u32 v71, v68, v66")
o(f"  ds_write_b128 v1, v[68:71] offset:{OFFL}")
o("  v_lshlrev_b32 v64, 12, v0")
o("  s_lshl_b32 s66, s2, 2")
for j in range(4):
    o(f"  buffer_store_dword v{68+j}, v64, s[44:47], s66 offen offset:{j*1024}")
o(f"  v_mov_b32 v72, {CH}")
o(f"  v_mov_b32 v73, {256*1024}")
o("  buffer_store_dword v72, v73, s[44:47], s66 offen")
o("K1_P_SCANDONE:")
o("  s_mov_b64 exec, s[64:65]")
o("  v_cmp_gt_u32 vcc, 400, v0")
o("  s_and_saveexec_b64 s[62:63], vcc")
o("  s_waitcnt lgkmcnt(0)")
o("  s_barrier")
stamp(3)
for k in range(8):
    o(f"  ds_read_b32 v{vD+k}, v{vA+k} offset:{OFFL}")
o("  s_waitcnt lgkmcnt(0)")
for k in range(8):
    o(f"  v_add_u32 v6, v{vD+k}, v{vR+k}")
    o(f"  v_lshlrev_b32 v6, 3, v6")
    o(f"  ds_write_b64 v6, v[{vL+2*k}:{vL+2*k+1}] offset:{STG}")
o("  s_mov_b64 exec, s[62:63]")
o("  s_waitcnt lgkmcnt(0)")
o("  s_barrier")
stamp(4)
for i in range(4):
    o(f"  ds_read_b128 v[{8+4*i}:{8+4*i+3}], v1 offset:{STG+8192*i}")
o("  v_add_u32 v2, 0x2000, v1")
o("  v_add_u32 v3, 0x4000, v1")
o("  v_add_u32 v4, 0x6000, v1")
for i in range(4):
    o(f"  s_waitcnt lgkmcnt({3-i})")
    o(f"  buffer_store_dwordx4 v[{8+4*i}:{8+4*i+3}], v{1+i}, s[40:43], 0 offen")
if DBG:
    o("  s_waitcnt vmcnt(0)")
    stamp(5)
    o("  s_waitcnt lgkmcnt(0)")
    o("  s_cmp_lg_u32 s2, {}".format(7))
    o("  s_cbranch_scc1 K1_END")
    o("  v_cmp_eq_u32 vcc, 0, v0")
    o("  s_and_saveexec_b64 s[70:71], vcc")
    o("  s_cbranch_execz K1_END")
    o("  s_load_dwordx2 s[72:73], s[0:1], 64")
    o("  s_waitcnt lgkmcnt(0)")
    srd(76, 72, 73, 256)
    o("  v_mov_b32 v1, 0")
    for i in range(1, 5+1):
        o(f"  s_sub_u32 s73, s{80+2*i}, s80")
        o(f"  v_mov_b32 v2, s73")
        o(f"  buffer_store_dword v2, v1, s[76:79], 0 offen offset:{4*i}")
o("  s_endpgm")

o("K1_GEMM:")
o(f"  s_sub_u32 s3, s2, {PW}")
o("  v_lshrrev_b32 v1, 6, v0")
o("  s_nop 0")
o("  v_readfirstlane_b32 s5, v1")
o("  v_and_b32 v2, 63, v0")
o("  v_and_b32 v3, 31, v2")
o("  v_lshrrev_b32 v4, 5, v2")
o("  v_lshlrev_b32 v10, 4, v0")
o("  s_and_b32 s6, s5, 1")
o("  s_lshr_b32 s26, s5, 1")
o("  s_lshl_b32 s4, s3, 2")
o("  s_add_u32 s4, s4, s26")
o("  s_lshl_b32 s4, s4, 5")
o("  s_waitcnt lgkmcnt(0)")
srd(28, 20, 21, 128*128)
srd(32, 18, 19, 8192)
srd(36, 8, 9, N*128)
XF = 16
WT = 32
WF = 48
AC = 80
o("  s_mov_b32 s26, 8192")
o(f"  buffer_load_dwordx4 v[{WT}:{WT+3}], v10, s[28:31], s26 offen")
o(f"  buffer_load_dwordx4 v[{WT+4}:{WT+7}], v10, s[32:35], 0 offen")
o("  v_add_u32 v7, s4, v3")
o("  v_lshlrev_b32 v7, 7, v7")
o("  v_lshl_add_u32 v7, v4, 4, v7")
for ks in range(4):
    o(f"  buffer_load_dwordx4 v[{XF+ks*4}:{XF+ks*4+3}], v7, s[36:39], 0 offen offset:{ks*32}")
srd_off(40, 24, 25, T_OFF, ROWS*256)
o("  v_lshlrev_b32 v5, 10, v4")
o("  v_bfe_u32 v6, v2, 2, 2")
o("  v_lshl_add_u32 v5, v6, 7, v5")
o("  v_bfe_u32 v6, v2, 4, 1")
o("  v_lshl_add_u32 v5, v6, 5, v5")
o("  v_and_b32 v6, 3, v2")
o("  v_lshl_add_u32 v5, v6, 3, v5")
o("  s_lshl_b32 s26, s6, 6")
o("  v_add_u32 v5, s26, v5")
for i in range(32):
    o(f"  v_mov_b32 v{AC+i}, 0")
o("  v_lshl_add_u32 v9, v4, 2, s4")
o("  v_lshlrev_b32 v9, 8, v9")
o("  v_lshl_add_u32 v9, v3, 2, v9")
o("  s_lshl_b32 s26, s6, 7")
o("  v_add_u32 v9, s26, v9")
for q in range(4):
    o(f"  s_mov_b32 s{64+q}, {(8*q)*256}")
o("  v_mov_b32 v12, 0x477fe000")
o("  v_mov_b32 v11, 0xc77fe000")
o("  s_waitcnt vmcnt(4)")
for idx, off in enumerate((0, 8192)):
    o(f"  ds_write_b128 v10, v[{WT+4*idx}:{WT+4*idx+3}] offset:{off}")
o("  s_waitcnt lgkmcnt(0)")
o("  s_barrier")
for m in range(2):
    for ks in range(4):
        for h in range(2):
            f = WF+m*16+ks*4+2*h
            o(f"  ds_read_b64_tr_b16 v[{f}:{f+1}], v5 offset:{m*8192 + ks*2048 + h*512}")
o("  s_waitcnt vmcnt(0) lgkmcnt(0)")
stamp(1)
for m in range(2):
    for ks in range(4):
        a = XF+ks*4
        b = WF+m*16+ks*4
        c = AC+m*16
        o(f"  v_mfma_f32_32x32x16_bf16 v[{c}:{c+15}], v[{a}:{a+3}], v[{b}:{b+3}], v[{c}:{c+15}]")
o("  s_nop 15")
o("  s_nop 3")
stamp(2)
for i in range(16):
    a1 = AC+i
    a2 = AC+16+i
    o(f"  v_mul_f32 v13, {NLOG2E:#x}, v{a1}")
    o(f"  v_med3_f32 v13, v13, v11, v12")
    o(f"  v_cvt_f16_f32 v13, v13")
    o(f"  v_and_b32 v13, 0xffff, v13")
    o(f"  v_and_b32 v14, 0x7fffffff, v{a2}")
    o(f"  v_and_b32 v15, 0x80000000, v{a2}")
    o(f"  v_sub_u32 v14, v14, v13")
    o(f"  v_add_u32 v14, 0x8000, v14")
    o(f"  v_max_i32 v14, 0, v14")
    o(f"  v_min_i32 v14, 0x7f7fffff, v14")
    o(f"  v_and_b32 v14, 0xffff0000, v14")
    o(f"  v_or3_b32 v{a1}, v14, v15, v13")
    o(f"  buffer_store_dword v{a1}, v9, s[40:43], s{64+(i>>2)} offen offset:{(i&3)*256}")
if DBG:
    o("  s_waitcnt vmcnt(0)")
    stamp(3)
    o("  s_waitcnt lgkmcnt(0)")
    o("  s_cmp_lg_u32 s2, {}".format(PW+7))
    o("  s_cbranch_scc1 K1_END")
    o("  v_cmp_eq_u32 vcc, 0, v0")
    o("  s_and_saveexec_b64 s[70:71], vcc")
    o("  s_cbranch_execz K1_END")
    o("  s_load_dwordx2 s[72:73], s[0:1], 64")
    o("  s_waitcnt lgkmcnt(0)")
    srd(76, 72, 73, 256)
    o("  v_mov_b32 v1, 64")
    for i in range(1, 3+1):
        o(f"  s_sub_u32 s73, s{80+2*i}, s80")
        o(f"  v_mov_b32 v2, s73")
        o(f"  buffer_store_dword v2, v1, s[76:79], 0 offen offset:{4*i}")
o("K1_END:")
o("  s_endpgm")

L_HIST = 0
L_GOFF = 256
L_MISC = 512
L_HN = 576
L_HEAD = 1024
L_ACC = L_HEAD + 16*256
L_A = L_ACC + BN*256
L_U = L_A + 64*256
L_SORT = L_U + 64*256
L_X = 150 * 1024
L_W = L_HEAD
NIT = KSEG // 4
o(".globl mpnn_k2_kernel")
o(".p2align 8")
o(".type mpnn_k2_kernel,@function")
o("mpnn_k2_kernel:")
o(f"  s_cmp_ge_u32 s2, {NB}")
o("  s_cbranch_scc1 K2_END")
stamp(0)
o("  s_load_dwordx4 s[8:11], s[0:1], 48")
o("  s_load_dwordx2 s[12:13], s[0:1], 64")
o("  s_load_dwordx2 s[14:15], s[0:1], 32")
o("  s_load_dwordx2 s[16:17], s[0:1], 0")
o("  s_load_dwordx2 s[24:25], s[0:1], 72")
o("  v_lshrrev_b32 v1, 6, v0")
o("  v_and_b32 v2, 63, v0")
o("  v_readfirstlane_b32 s5, v1")
o("  v_lshlrev_b32 v3, 4, v0")
o("  v_lshrrev_b32 v4, 3, v0")
o("  v_and_b32 v5, 7, v0")
o("  v_lshlrev_b32 v5, 1, v5")
o("  v_and_b32 v6, 15, v2")
o("  v_lshlrev_b32 v6, 4, v6")
o("  v_lshlrev_b32 v7, 2, v4")
o("  s_and_b32 s7, s2, 7")
o("  s_lshl_b32 s7, s7, 5")
o("  s_lshr_b32 s58, s2, 3")
o("  s_or_b32 s7, s7, s58")
o("  s_lshl_b32 s7, s7, 10")
o(f"  s_mul_i32 s6, s2, {BN*256}")
o("  s_waitcnt lgkmcnt(0)")
srd(48, 8, 9, 129*128)
srd(44, 14, 15, 8192)
srd(40, 16, 17, N*128)
srd_off(28, 24, 25, OFFT_OFF, 257*1024)
o("  buffer_load_dword v8, v7, s[28:31], s7 offen")
o("  buffer_load_dword v9, v7, s[28:31], s7 offen offset:1024")
o("  buffer_load_dword v24, v7, s[28:31], s7 offen offset:512")
o("  buffer_load_dword v25, v7, s[28:31], s7 offen offset:1536")
srd_off(32, 24, 25, REC_OFF, PW*CH*8)
srd_off(36, 24, 25, T_OFF, ROWS)
o("  s_or_b32 s37, s37, 0x01000000")
srd(52, 10, 11, N*128)
o("  v_mov_b32 v120, 0")
o("  v_mov_b32 v121, 0")
o("  v_mov_b32 v122, 0")
o("  v_mov_b32 v123, 0")
o("  s_cmp_lg_u32 s5, 0")
o("  s_cbranch_scc1 K2_Z2")
o(f"  ds_write_b128 v3, v[120:123] offset:0")
o("K2_Z2:")
o("  v_lshrrev_b32 v10, 4, v2")
o("  v_and_b32 v11, 1, v10")
o("  v_lshlrev_b32 v11, 3, v11")
o("  v_lshrrev_b32 v10, 1, v10")
o("  v_lshl_add_u32 v11, v10, 2, v11")
o("  v_add_u32 v36, v11, v6")
o("  v_mov_b32 v27, 1")
o("  v_mov_b32 v32, 0x3c00")
o("  s_mov_b32 s60, 0")
o(f"  v_mov_b32 v11, {CH*8}")
o("  v_add_u32 v10, 128, v4")
o("  s_waitcnt vmcnt(0)")
stamp(1)
o("  v_sub_u32 v9, v9, v8")
o("  v_sub_u32 v25, v25, v24")
o(f"  v_cmp_gt_u32 vcc, {PW}, v10")
o("  v_add_u32 v8, v8, v5")
o("  v_add_u32 v24, v24, v5")
o("  v_cndmask_b32 v25, 0, v25, vcc")
o(f"  v_min_u32 v9, {CH}, v9")
o(f"  v_min_u32 v25, {CH}, v25")
o("  v_lshlrev_b32 v8, 3, v8")
o("  v_lshlrev_b32 v24, 3, v24")
o("  v_mad_u32_u24 v8, v4, v11, v8")
o("  v_mad_u32_u24 v24, v10, v11, v24")
o("  v_max_u32 v23, v9, v25")
o("  v_sub_u32 v26, v9, v5")
o("  v_sub_u32 v25, v25, v5")
RL = 40
RK = 64
REM = (26, 25)
ADR = (8, 24)
NI = KSEG // 16
o("K2_ROUND:")
for p in range(2):
    for it in range(NI):
        q = p*NI + it
        o(f"  v_cmpx_lt_i32 vcc, {16*it}, v{REM[p]}")
        o(f"  s_cbranch_execz K2_LD_DONE{p}")
        o(f"  buffer_load_dwordx4 v[{RL+4*q}:{RL+4*q+3}], v{ADR[p]}, s[32:35], 0 offen offset:{128*it}")
    o(f"K2_LD_DONE{p}:")
    o("  s_mov_b64 exec, -1")
o("  s_cmp_lg_u32 s60, 0")
o("  s_cbranch_scc1 K2_SETUP_SKIP")
o("  v_lshrrev_b32 v10, 1, v6")
o(f"  v_add_u32 v10, {128*128}, v10")
o("  buffer_load_dwordx2 v[20:21], v10, s[48:51], 0 offen")
o("  v_and_b32 v10, 0x1ff0, v3")
o("  s_cmp_ge_u32 s5, 8")
o("  s_cbranch_scc1 K2_W1")
o("  buffer_load_dwordx4 v[12:15], v10, s[48:51], 0 offen")
o(f"  s_mul_i32 s59, s2, {BN*128}")
o("  buffer_load_dwordx4 v[88:91], v3, s[40:43], s59 offen")
o("  s_waitcnt lgkmcnt(0)")
o("  s_barrier")
stamp(7)
o("  s_waitcnt vmcnt(3)")
o("  s_branch K2_W2")
o("K2_W1:")
o("  buffer_load_dwordx4 v[12:15], v10, s[44:47], 0 offen")
o("  s_waitcnt lgkmcnt(0)")
o("  s_barrier")
stamp(7)
o("  s_waitcnt vmcnt(2)")
o("K2_W2:")
o(f"  v_mov_b32 v11, {L_MISC}")
o("  ds_max_u32 v11, v23")
o("  s_branch K2_SETUP_DONE")
o("K2_SETUP_SKIP:")
o("  s_waitcnt lgkmcnt(0)")
o("  s_barrier")
o("  s_waitcnt vmcnt(0)")
o("K2_SETUP_DONE:")
stamp(2)
def rec_loop(tag, body):
    for p in range(2):
        for it in range(NI):
            for h in range(2):
                q = p*NI + it
                o(f"  v_cmpx_lt_i32 vcc, {16*it+h}, v{REM[p]}")
                o(f"  s_cbranch_execz K2_{tag}_DONE{p}")
                body(RL+4*q+2*h, 2*q+h)
        o(f"K2_{tag}_DONE{p}:")
        o("  s_mov_b64 exec, -1")
def b_at(r, i):
    o(f"  v_lshlrev_b32 v{r+1}, 2, v{r+1}")
    o(f"  ds_add_rtn_u32 v{RK+i}, v{r+1}, v27 offset:{L_HIST}")
rec_loop("AT", b_at)
o("  s_cmp_lg_u32 s60, 0")
o("  s_cbranch_scc1 K2_WST_SKIP")
o("  s_waitcnt vmcnt(0)")
o(f"  ds_write_b128 v3, v[12:15] offset:{L_W}")
o("  s_cmp_ge_u32 s5, 8")
o("  s_cbranch_scc1 K2_XST")
o("  v_lshrrev_b32 v10, 3, v0")
o("  v_lshl_add_u32 v10, v10, 4, v3")
o(f"  v_add_u32 v10, {L_X}, v10")
o("  ds_write_b128 v10, v[88:91]")
o("K2_XST:")
o("  v_lshlrev_b32 v28, 16, v20")
o("  v_and_b32 v29, 0xffff0000, v20")
o("  v_lshlrev_b32 v30, 16, v21")
o("  v_and_b32 v31, 0xffff0000, v21")
for j in range(4):
    o(f"  v_mul_f32 v{28+j}, {NLOG2E:#x}, v{28+j}")
o("K2_WST_SKIP:")
o("  s_waitcnt lgkmcnt(0)")
o("  s_barrier")
stamp(8)
o("  s_cmp_lg_u32 s60, 0")
o("  s_cbranch_scc1 K2_PF_SKIP")
o("  s_lshr_b32 s58, s2, 3")
o(f"  s_mul_i32 s58, s58, {392*256}")
for i in range(7 if EXP == "prefetch" else 0):
    o(f"  buffer_load_dwordx4 v[104:107], v3, s[36:39], s58 offen")
    o(f"  s_add_u32 s58, s58, 16384")

o("K2_PF_SKIP:")
o("  v_lshlrev_b32 v11, 2, v2")
o(f"  ds_read_b32 v37, v11 offset:{L_HIST}")
o(f"  v_cmp_gt_u32 s[56:57], {BN}, v2")
o("  s_waitcnt lgkmcnt(0)")
o("  v_add_u32 v34, 3, v37")
o("  v_and_b32 v34, -4, v34")
o("  v_max_u32 v34, 4, v34")
o("  v_cndmask_b32 v34, 0, v34, s[56:57]")
o("  v_mov_b32 v35, v34")
wave_scan(35)
o("  v_readlane_b32 s61, v35, 63")
o("  v_sub_u32 v35, v35, v34")
o("  s_add_u32 s62, s61, 15")
o("  s_and_b32 s62, s62, -16")
o("  v_mov_b32 v33, s62")
o("  s_nop 1")
o("  v_cndmask_b32 v33, v33, v35, s[56:57]")
o("  s_cmp_lg_u32 s5, 0")
o("  s_cbranch_scc1 K2_PAD_DONE")
o(f"  v_mov_b32 v38, {N}")
o("  v_mov_b32 v39, 0")
o("  v_add_u32 v10, v35, v37")
o("  v_lshlrev_b32 v10, 3, v10")
o("  v_sub_u32 v34, v34, v37")
for j in range(4):
    o(f"  v_cmpx_lt_u32 vcc, {j}, v34")
    o(f"  ds_write_b64 v10, v[38:39] offset:{L_SORT+8*j}")
o("  s_mov_b64 exec, -1")
o("  v_add_u32 v10, s61, v2")
o("  v_lshlrev_b32 v10, 3, v10")
o("  v_cmpx_gt_u32 vcc, 16, v2")
o(f"  ds_write_b64 v10, v[38:39] offset:{L_SORT}")
o("  s_mov_b64 exec, -1")
o("K2_PAD_DONE:")
for p in range(2):
    for it in range(NI):
        for h in range(2):
            q = p*NI + it
            r = RL+4*q+2*h
            o(f"  v_cmp_lt_i32 vcc, {16*it+h}, v{REM[p]}")
            o(f"  s_cbranch_vccz K2_SC1_DONE{p}")
            o(f"  ds_bpermute_b32 v{76+2*q+h}, v{r+1}, v33")
    o(f"K2_SC1_DONE{p}:")
o("  s_waitcnt lgkmcnt(0)")
def b_wr(r, i):
    o(f"  v_add_u32 v11, v{76+i}, v{RK+i}")
    o(f"  v_lshlrev_b32 v11, 3, v11")
    o(f"  v_and_b32 v{r+1}, 0xffff0000, v{r}")
    o(f"  v_and_b32 v{r}, 0x3fff, v{r}")
    o(f"  ds_write_b64 v11, v[{r}:{r+1}] offset:{L_SORT}")
rec_loop("SC2", b_wr)
stamp(9)
o("  v_readlane_b32 s62, v33, 49")
o("  s_lshr_b32 s63, s62, 2")
o("  s_mul_i32 s64, s63, s5")
o("  s_lshr_b32 s64, s64, 4")
o("  s_add_u32 s65, s5, 1")
o("  s_mul_i32 s65, s63, s65")
o("  s_lshr_b32 s65, s65, 4")
o("  s_lshl_b32 s66, s64, 2")
o("  s_lshl_b32 s67, s65, 2")
o(f"  v_cmp_gt_u32 s[56:57], {BN}, v2")
o("  v_cmp_ge_u32 vcc, s66, v33")
o("  s_and_b64 vcc, vcc, s[56:57]")
o("  s_bcnt1_i32_b64 s68, vcc")
o("  s_sub_u32 s68, s68, 1")
o("  s_add_u32 s69, s68, 1")
o("  v_readlane_b32 s70, v33, s69")
o("  v_readlane_b32 s72, v33, s68")
o("  s_cmp_lg_u32 s72, s66")
o("  s_cselect_b32 s73, 1, 0")
o("  s_cmp_ge_u32 s64, s65")
o("  s_cselect_b32 s73, 0, s73")
o("  s_cmp_lg_u32 s73, 0")
o("  s_cselect_b32 s74, s68, -1")
o("  v_mov_b32 v11, s74")
o("  s_lshl_b32 s74, s5, 2")
o("  v_mov_b32 v10, s74")
o(f"  ds_write_b32 v10, v11 offset:{L_HN}")
o("  s_waitcnt lgkmcnt(0)")
o("  s_barrier")
stamp(3)
if DBG:
    pass
AV = 40
AC2 = 44
RB = 48
EBL = [12,13,14,15, 20,21,22,23, 4,5,9,10]
WB = 72
TT = 120
NBUF = int(os.environ.get("NBUF","2"))
VRA = 34
VAA = 35
VRB = 37
o("  v_lshrrev_b32 v11, 4, v2")
o("  v_lshlrev_b32 v11, 3, v11")
o("  s_lshl_b32 s71, s66, 3")
o(f"  v_add_u32 v{VRA}, s71, v11")
o("  v_mov_b32 v38, 1.0")
o("  v_mov_b32 v39, 1.0")
R = int(os.environ.get("RING","4"))
for i in range(R):
    o(f"  v_mov_b32 v{RB+2*i+1}, v6")
def issue1(j, ahead, off):
    o(f"  s_add_u32 s78, s66, {4*ahead}")
    o("  s_cmp_lt_u32 s78, s67")
    o(f"  s_cselect_b32 s38, {ROWS}, 0")
    r = RB+2*j
    if EXP == "samerow":
        o(f"  v_mov_b32 v{r}, 0")
    o(f"  buffer_load_dwordx4 v[{WB+4*j}:{WB+4*j+3}], v[{r}:{r+1}], s[36:39], 0 idxen offen")
    o(f"  ds_read_b32 v{r}, v{VRB} offset:{L_SORT+off}")
uid = [0]
def compute1(i, off, fast=False):
    e = EBL[i]
    ep, es = e & ~1, e & 1
    w = WB+4*i
    t = TT + (i & 1)*4
    o(f"  s_waitcnt vmcnt({R-1})")
    if fast:
        for j in range(4):
            o(f"  v_fma_mix_f32 v{t+j}, v{e}, v{28+j}, v{w+j} op_sel_hi:[0,0,1]")
        o(f"  ds_read_b32 v{e}, v{VRA} offset:{L_SORT+off+4}")
    else:
        for j in (0, 2):
            o(f"  v_pk_fma_f32 v[{t+j}:{t+j+1}], v[{ep}:{ep+1}], v[{28+j}:{29+j}], v[{AV+j}:{AV+j+1}] op_sel:[{es},0,0] op_sel_hi:[{es},1,1]")
        o(f"  ds_read_b32 v{e}, v{VRA} offset:{L_SORT+off+4}")
        for j in range(4):
            o(f"  v_dot2_f32_f16 v{t+j}, v{w+j}, v32, v{t+j}")
    for j in range(4):
        o(f"  v_exp_f32 v{t+j}, v{t+j}")
    o("  s_add_u32 s66, s66, 4")
    for j in (0, 2):
        if fast:
            o(f"  v_pk_fma_f32 v[{t+j}:{t+j+1}], v[{t+j}:{t+j+1}], v[{AV+j}:{AV+j+1}], v[38:39]")
        else:
            o(f"  v_pk_add_f32 v[{t+j}:{t+j+1}], v[{t+j}:{t+j+1}], v[38:39]")
    for j in range(4):
        o(f"  v_rcp_f32 v{t+j}, v{t+j}")
    o("  s_cmp_lg_u32 s66, s70")
    for j in (0, 2):
        o(f"  v_pk_fma_f32 v[{AC2+j}:{AC2+j+1}], v[{t+j}:{t+j+1}], v[{w+j}:{w+j+1}], v[{AC2+j}:{AC2+j+1}]")
    uid[0] += 1
    u = uid[0]
    o(f"  s_cbranch_scc1 K2_NF{u}")
    o("  s_getpc_b64 s[76:77]")
    o("  s_add_u32 s76, s76, 12")
    o("  s_addc_u32 s77, s77, 0")
    o("  s_branch K2_FLUSH")
    o(f"K2_NF{u}:")
for i in range(R):
    o(f"  ds_read_b32 v{RB+2*i}, v{VRA} offset:{L_SORT+32*i}")
    o(f"  ds_read_b32 v{EBL[i]}, v{VRA} offset:{L_SORT+32*i+4}")
o(f"  v_add_u32 v{VRA}, {32*R}, v{VRA}")
o(f"  v_mov_b32 v{VRB}, v{VRA}")
o("  s_waitcnt lgkmcnt(0)")
for i in range(R-1):
    issue1(i, i, 32*i)
o(f"  v_add_u32 v{VRB}, {32*(R-1)}, v{VRB}")
o("  s_cmp_lg_u32 s60, 0")
o("  s_cbranch_scc1 K2_MM_SKIP")
o("  s_cmp_ge_u32 s5, 8")
o("  s_cbranch_scc1 K2_MM_DONE")
ACM = 104
o("  v_lshrrev_b32 v1, 5, v2")
o("  v_lshlrev_b32 v7, 10, v1")
o("  v_bfe_u32 v11, v2, 2, 2")
o("  v_lshl_add_u32 v7, v11, 7, v7")
o("  v_bfe_u32 v11, v2, 4, 1")
o("  v_lshl_add_u32 v7, v11, 5, v7")
o("  v_and_b32 v11, 3, v2")
o("  v_lshl_add_u32 v7, v11, 3, v7")
o("  s_and_b32 s58, s5, 1")
o("  s_bfe_u32 s59, s5, 0x10001")
o("  s_lshl_b32 s78, s58, 6")
o("  s_lshl_b32 s79, s59, 13")
o("  s_add_u32 s78, s78, s79")
o("  v_add_u32 v7, s78, v7")
o("  s_lshr_b32 s78, s5, 2")
o(f"  s_mul_i32 s78, s78, {32*144}")
o(f"  s_add_u32 s78, s78, {L_X}")
o("  v_and_b32 v11, 31, v2")
o("  v_mul_u32_u24 v11, 144, v11")
o("  v_lshl_add_u32 v11, v1, 4, v11")
o("  v_add_u32 v11, s78, v11")
for i in range(16):
    o(f"  v_mov_b32 v{ACM+i}, 0")
for half in range(2):
    for k2 in range(2):
        ks = half*2 + k2
        for h in range(2):
            f = 40+k2*4+2*h
            o(f"  ds_read_b64_tr_b16 v[{f}:{f+1}], v7 offset:{L_W + ks*2048 + h*512}")
        o(f"  ds_read_b128 v[{120+k2*4}:{123+k2*4}], v11 offset:{ks*32}")
    o("  s_waitcnt lgkmcnt(0)")
    for k2 in range(2):
        o(f"  v_mfma_f32_32x32x16_bf16 v[{ACM}:{ACM+15}], v[{120+k2*4}:{123+k2*4}], v[{40+k2*4}:{43+k2*4}], v[{ACM}:{ACM+15}]")
    o("  s_nop 7")
o("  s_lshr_b32 s78, s5, 2")
o("  s_lshl_b32 s78, s78, 13")
o("  s_lshl_b32 s79, s58, 7")
o("  s_add_u32 s78, s78, s79")
o("  s_lshl_b32 s79, s59, 14")
o("  s_add_u32 s78, s78, s79")
o("  v_lshlrev_b32 v7, 10, v1")
o("  v_and_b32 v11, 31, v2")
o("  v_lshl_add_u32 v7, v11, 2, v7")
o("  v_add_u32 v7, s78, v7")
o(f"  s_cmp_eq_u32 s59, 0")
o(f"  s_cselect_b32 s79, {NLOG2E:#x}, 1.0")
o("  v_mov_b32 v11, s79")
o("  s_nop 7")
for i in range(16):
    o(f"  v_mul_f32 v{ACM+i}, v{ACM+i}, v11")
    o(f"  ds_write_b32 v7, v{ACM+i} offset:{L_A + ((i&3) + 8*(i>>2))*256}")
o("  s_cmp_lg_u32 s59, 0")
o("  s_cbranch_scc1 K2_MM_DONE")
o(f"  v_and_b32 v11, 0x7fffffff, v{ACM}")
for i in range(1, 16):
    o(f"  v_and_b32 v1, 0x7fffffff, v{ACM+i}")
    o("  v_max_u32 v11, v11, v1")
o(f"  v_mov_b32 v1, {L_MISC+4}")
o("  ds_max_u32 v1, v11")
o("K2_MM_DONE:")
o("  s_waitcnt lgkmcnt(0)")
o("  s_barrier")
o(f"  v_mov_b32 v1, {L_MISC+4}")
o("  ds_read_b32 v11, v1")
o("  s_waitcnt lgkmcnt(0)")
o("  v_readfirstlane_b32 s75, v11")
o("  s_cmp_le_u32 s75, 0x42700000")
o("  s_cselect_b32 s75, 1, 0")
if EXP == "safe":
    o("  s_mov_b32 s75, 0")
o("K2_MM_SKIP:")
o("  s_cmp_ge_u32 s64, s65")
o("  s_cbranch_scc1 K2_NOFINAL")
o("  s_lshl_b32 s71, s68, 8")
o(f"  v_add_u32 v{VAA}, s71, v6")
o(f"  ds_read_b128 v[{AV}:{AV+3}], v{VAA} offset:{L_A}")
for j in range(4):
    o(f"  v_mov_b32 v{AC2+j}, 0")
o("  s_setprio 3")
pid = [0]
def prio_update():
    if not PRIO:
        return
    pid[0] += 1
    u = pid[0]
    o("  s_sub_u32 s78, s67, s66")
    o(f"  s_cmp_gt_u32 s78, {16*P3}")
    o(f"  s_cbranch_scc1 K2_PD{u}")
    o(f"  s_cmp_gt_u32 s78, {16*P2}")
    o(f"  s_cbranch_scc1 K2_PA{u}")
    o(f"  s_cmp_gt_u32 s78, {16*P1}")
    o(f"  s_cbranch_scc1 K2_PB{u}")
    o("  s_setprio 0")
    o(f"  s_branch K2_PD{u}")
    o(f"K2_PA{u}:")
    o("  s_setprio 2")
    o(f"  s_branch K2_PD{u}")
    o(f"K2_PB{u}:")
    o("  s_setprio 1")
    o(f"K2_PD{u}:")
o("  s_waitcnt lgkmcnt(0)")
o("  s_cmp_eq_u32 s75, 0")
o("  s_cbranch_scc1 K2_LOOP")
for j in range(4):
    o(f"  v_exp_f32 v{AV+j}, v{AV+j}")
for fast in (True, False):
    lab = "K2_LOOPF" if fast else "K2_LOOP"
    o(f"{lab}:")
    for i in range(R):
        o("  s_waitcnt lgkmcnt(2)")
        issue1((i - 1) % R, R-1, 32*i)
        compute1(i, 32*i, fast)
        o("  s_cmp_ge_u32 s66, s67")
        o("  s_cbranch_scc1 K2_LOOP_EXIT")
    o(f"  v_add_u32 v{VRA}, {32*R}, v{VRA}")
    o(f"  v_add_u32 v{VRB}, {32*R}, v{VRB}")
    prio_update()
    o(f"  s_branch {lab}")
o("K2_LOOP_EXIT:")
o("  s_setprio 0")
o("  v_readlane_b32 s72, v33, s68")
o("  s_cmp_ge_u32 s72, s67")
o("  s_cbranch_scc1 K2_NOFINAL")
o("  s_getpc_b64 s[76:77]")
o("  s_add_u32 s76, s76, 12")
o("  s_addc_u32 s77, s77, 0")
o("  s_branch K2_FLUSH")
o("K2_NOFINAL:")
o("  s_waitcnt vmcnt(0) lgkmcnt(0)")
o("K2_MAIN_DONE:")
stamp(4)
o(f"  v_mov_b32 v11, {L_MISC}")
o("  ds_read_b32 v34, v11")
o("  s_barrier")
o("  v_lshlrev_b32 v10, 2, v2")
o(f"  ds_read_b32 v35, v10 offset:{L_HN}")
o(f"  ds_read_b32 v11, v10 offset:{L_HN-4}")
o("  s_lshl_b32 s71, s5, 8")
o("  v_add_u32 v20, s71, v36")
o(f"  ds_read_b32 v21, v20 offset:{L_HEAD}")
o("  s_waitcnt lgkmcnt(0)")
o("  v_readfirstlane_b32 s61, v34")
o(f"  s_min_u32 s61, s61, {CH}")
o("  v_cmp_eq_u32 vcc, v35, v11")
o("  v_cmp_ne_u32 s[56:57], -1, v35")
o("  s_and_b64 vcc, vcc, s[56:57]")
o("  s_and_b32 s72, vcc_lo, 0xfffe")
o("  s_cmp_lg_u32 s72, 0")
o("  s_cbranch_scc1 K2_CB_SLOW")
o("  s_cmp_lt_u32 s63, 16")
o("  s_cbranch_scc1 K2_CB_SLOW")
o("  v_readlane_b32 s72, v35, s5")
o("  s_cmp_eq_u32 s72, -1")
o("  s_cbranch_scc1 K2_CB_F1")
o("  s_lshl_b32 s72, s72, 8")
o("  v_add_u32 v20, s72, v36")
o(f"  ds_read_b32 v22, v20 offset:{L_ACC}")
o("  s_waitcnt lgkmcnt(0)")
o("  v_add_f32 v22, v22, v21")
o(f"  ds_write_b32 v20, v22 offset:{L_ACC}")
o("  s_waitcnt lgkmcnt(0)")
o("K2_CB_F1:")
o("  s_barrier")
o(f"  ds_read_b128 v[12:15], v3 offset:{L_ACC}")
o(f"  ds_read_b128 v[16:19], v3 offset:{L_U}")
o("  s_waitcnt lgkmcnt(0)")
o("  s_branch K2_CB_DONE")
o("K2_CB_SLOW:")
o(f"  ds_read_b128 v[12:15], v3 offset:{L_ACC}")
o(f"  ds_read_b128 v[16:19], v3 offset:{L_U}")
o("  v_lshrrev_b32 v10, 4, v0")
o("  s_waitcnt lgkmcnt(0)")
for w in range(16):
    o(f"  v_readlane_b32 s72, v35, {w}")
    o("  s_nop 1")
    o("  v_cmpx_eq_u32 vcc, s72, v10")
    o(f"  s_cbranch_execz K2_CB{w}")
    o(f"  ds_read_b128 v[20:23], v6 offset:{L_HEAD+256*w}")
    o("  s_waitcnt lgkmcnt(0)")
    for j in range(4):
        o(f"  v_add_f32 v{12+j}, v{12+j}, v{20+j}")
    o(f"K2_CB{w}:")
    o("  s_mov_b64 exec, -1")
o("K2_CB_DONE:")
o(f"  s_add_u32 s60, s60, {KSEG}")
o("  s_cmp_ge_u32 s60, s61")
o("  s_cbranch_scc1 K2_FINAL")
o("  v_cmp_gt_u32 vcc, 784, v0")
o("  s_and_saveexec_b64 s[56:57], vcc")
o("  s_cbranch_execz K2_NR0")
o(f"  ds_write_b128 v3, v[12:15] offset:{L_ACC}")
o("K2_NR0:")
o("  s_mov_b64 exec, s[56:57]")
o("  s_cmp_lg_u32 s5, 0")
o("  s_cbranch_scc1 K2_NR1")
o("  v_lshlrev_b32 v11, 2, v2")
o("  v_mov_b32 v34, 0")
o(f"  ds_write_b32 v11, v34 offset:{L_HIST}")
o("K2_NR1:")
o(f"  v_subrev_u32 v26, {KSEG}, v26")
o(f"  v_subrev_u32 v25, {KSEG}, v25")
o(f"  v_add_u32 v8, {KSEG*8}, v8")
o(f"  v_add_u32 v24, {KSEG*8}, v24")
o("  s_branch K2_ROUND")
o("K2_FINAL:")
stamp(5)
if DBG:
    pass
o("  v_cmp_gt_u32 vcc, 784, v0")
o("  s_and_saveexec_b64 s[56:57], vcc")
o("  s_cbranch_execz K2_FIN2")
o("  v_lshlrev_b32 v11, 3, v0")
o(f"  s_mul_i32 s6, s2, {BN*128}")
for j in range(4):
    o(f"  v_add_f32 v{12+j}, v{12+j}, v{16+j}")
for j in range(4):
    o(f"  v_mul_f32 v{20+j}, {NLOG2E:#x}, v{12+j}")
for j in range(4):
    o(f"  v_exp_f32 v{20+j}, v{20+j}")
for j in range(4):
    o(f"  v_add_f32 v{20+j}, 1.0, v{20+j}")
for j in range(4):
    o(f"  v_rcp_f32 v{20+j}, v{20+j}")
o("  s_nop 0")
for j in range(4):
    o(f"  v_mul_f32 v{12+j}, v{12+j}, v{20+j}")
o("  v_cvt_pk_bf16_f32 v12, v12, v13")
o("  v_cvt_pk_bf16_f32 v13, v14, v15")
o("  buffer_store_dwordx2 v[12:13], v11, s[52:55], s6 offen")
o("K2_FIN2:")
o("  s_mov_b64 exec, -1")
if DBG:
    stamp(6)
    o("  s_waitcnt lgkmcnt(0)")
    o("  s_cmp_lg_u32 s2, 5")
    o("  s_cbranch_scc1 K2_END")
    o("  s_lshl_b32 s72, s5, 4")
    srd(76, 12, 13, 256)
    o("  v_mov_b32 v1, s72")
    for n, i in enumerate(STAMPS):
        o(f"  s_sub_u32 s73, s{80+2*i}, s80")
        o(f"  v_mov_b32 v2, s73")
        o(f"  buffer_store_dword v2, v1, s[76:79], 0 offen offset:{4*n}")
o("K2_END:")
o("  s_endpgm")
o("K2_FLUSH:")
o("  s_nop 1")
o(f"  v_permlane32_swap_b32 v{AC2}, v{AC2+1}")
o(f"  v_permlane32_swap_b32 v{AC2+2}, v{AC2+3}")
o("  s_lshl_b32 s71, s68, 8")
o(f"  v_add_u32 v{VAA}, s71, v6")
o(f"  v_add_f32 v{AC2}, v{AC2}, v{AC2+1}")
o(f"  v_add_f32 v{AC2+2}, v{AC2+2}, v{AC2+3}")
o(f"  ds_read_b128 v[{AV}:{AV+3}], v{VAA} offset:{L_A+256}")
o(f"  v_add_u32 v{VAA}, s71, v36")
o(f"  v_permlane16_swap_b32 v{AC2}, v{AC2+2}")
o("  s_cmp_lg_u32 s73, 0")
o("  s_cbranch_scc1 K2_FL_HEAD")
o(f"  v_add_f32 v{AC2}, v{AC2}, v{AC2+2}")
o("  s_cmp_eq_u32 s60, 0")
o("  s_cbranch_scc1 K2_FL_W")
o(f"  ds_read_b32 v{AC2+1}, v{VAA} offset:{L_ACC}")
o("  s_waitcnt lgkmcnt(0)")
o(f"  v_add_f32 v{AC2}, v{AC2}, v{AC2+1}")
o("K2_FL_W:")
o(f"  ds_write_b32 v{VAA}, v{AC2} offset:{L_ACC}")
o("  s_branch K2_FL_C")
o("K2_FL_HEAD:")
o(f"  v_add_f32 v{AC2}, v{AC2}, v{AC2+2}")
o("  s_lshl_b32 s71, s5, 8")
o(f"  v_add_u32 v{VAA}, s71, v36")
o(f"  ds_write_b32 v{VAA}, v{AC2} offset:{L_HEAD}")
o("  s_mov_b32 s73, 0")
o("K2_FL_C:")
o("  s_add_u32 s68, s68, 1")
o("  s_add_u32 s69, s68, 1")
o("  v_readlane_b32 s70, v33, s69")
o("  s_waitcnt lgkmcnt(0)")
o("  s_cmp_eq_u32 s75, 0")
o("  s_cbranch_scc1 K2_FL_S")
for j in range(4):
    o(f"  v_exp_f32 v{AV+j}, v{AV+j}")
o("K2_FL_S:")
for j in range(4):
    o(f"  v_mov_b32 v{AC2+j}, 0")
o("  s_setpc_b64 s[76:77]")

o('.section .rodata,"a"')
for name, vg in (("mpnn_k1_kernel", 112), ("mpnn_k2_kernel", 128)):
    o(".p2align 6")
    o(f".amdhsa_kernel {name}")
    o(f"  .amdhsa_next_free_vgpr {vg}")
    o("  .amdhsa_next_free_sgpr 102")
    o(f"  .amdhsa_accum_offset {vg}")
    o("  .amdhsa_group_segment_fixed_size 0")
    o("  .amdhsa_kernarg_size 80")
    o("  .amdhsa_user_sgpr_count 2")
    o("  .amdhsa_user_sgpr_kernarg_segment_ptr 1")
    o("  .amdhsa_system_sgpr_workgroup_id_x 1")
    o(".end_amdhsa_kernel")

import re
_i = out.index("mpnn_k2_kernel:")
for _k in range(_i):
    if out[_k].lstrip().startswith("buffer_store_dword"):
        out[_k] += " sc1"
open(sys.argv[1] if len(sys.argv) > 1 else "standalone__edge_featured_mpnn_egc__graph.s", "w").write("\n".join(out) + "\n")
```

```python
import sys

N = 12500
E = 800000
NB = 256
BN = 49
PW = 250
CH = 3200
GW = 98
ROWS = 12544
KSEG = 48
T_OFF = 0
A_OFF = 4 << 20
U_OFF = 8 << 20
REC_OFF = 12 << 20
OFFT_OFF = 20 << 20
NLOG2E = 0xbfb8aa3b

import os
DBG = int(os.environ.get("DBG","0"))
EXP = os.environ.get("EXP","")
PRIO = int(os.environ.get("PRIO","1"))
STAMPS = [int(x) for x in os.environ.get("STAMPS","2,3,4,5").split(",")]
P1, P2, P3 = [int(x) for x in os.environ.get("PTH","1,3,6").split(",")]
out = []
def stamp(i):
    if DBG:
        o(f"  s_memtime s[{80+2*i}:{81+2*i}]")
def o(s=""):
    out.append(s)

def srd(d, lo, hi, size):
    o(f"  s_mov_b32 s{d}, s{lo}")
    o(f"  s_and_b32 s{d+1}, s{hi}, 0xffff")
    o(f"  s_mov_b32 s{d+2}, {size}")
    o(f"  s_mov_b32 s{d+3}, 0x00020000")

def srd_off(d, lo, hi, off, size):
    o(f"  s_add_u32 s{d}, s{lo}, {off}")
    o(f"  s_addc_u32 s{d+1}, s{hi}, 0")
    o(f"  s_and_b32 s{d+1}, s{d+1}, 0xffff")
    o(f"  s_mov_b32 s{d+2}, {size}")
    o(f"  s_mov_b32 s{d+3}, 0x00020000")

def wave_scan(v, tmp=None):
    for sh in (1, 2, 4, 8):
        o("  s_nop 1")
        o(f"  v_add_u32_dpp v{v}, v{v}, v{v} row_shr:{sh} row_mask:0xf bank_mask:0xf")
    o("  s_nop 1")
    o(f"  v_add_u32_dpp v{v}, v{v}, v{v} row_bcast:15 row_mask:0xa bank_mask:0xf")
    o("  s_nop 1")
    o(f"  v_add_u32_dpp v{v}, v{v}, v{v} row_bcast:31 row_mask:0xc bank_mask:0xf")
    o("  s_nop 1")

K2_LDS = 160 * 1024
K1_LDS = 36 * 1024
o(f"; @launch kernel=mpnn_k1_kernel grid=({PW+GW},1,1) block=(512,1,1) lds={K1_LDS}")
o(f"; @launch kernel=mpnn_k2_kernel grid=({NB},1,1) block=(1024,1,1) lds={K2_LDS}")
o('.amdgcn_target "amdgcn-amd-amdhsa--gfx950"')
o(".text")

o(".globl mpnn_k1_kernel")
o(".p2align 8")
o(".type mpnn_k1_kernel,@function")
o("mpnn_k1_kernel:")
o(f"  s_cmp_ge_u32 s2, {PW+GW}")
o("  s_cbranch_scc1 K1_END")
stamp(0)
if os.environ.get("GFIRST"):
    o(f"  s_add_u32 s3, s2, {PW}")
    o(f"  s_sub_u32 s4, s2, {GW}")
    o(f"  s_cmp_lt_u32 s2, {GW}")
    o("  s_cselect_b32 s2, s3, s4")
o("  s_load_dwordx8 s[8:15], s[0:1], 0")
o("  s_load_dwordx8 s[16:23], s[0:1], 32")
o("  s_load_dwordx2 s[24:25], s[0:1], 72")
o(f"  s_cmp_ge_u32 s2, {PW}")
o("  s_cbranch_scc1 K1_GEMM")

HIST = 0
OFFL = 1024
STG = 2048
o("  v_lshlrev_b32 v1, 4, v0")
o("  v_lshlrev_b32 v2, 3, v0")
o("  v_lshlrev_b32 v3, 2, v0")
o("  v_mov_b32 v4, 0")
o(f"  ds_write_b32 v3, v4 offset:{HIST}")
o(f"  s_mul_i32 s50, s2, {CH*4}")
o(f"  s_mul_i32 s54, s2, {CH*2}")
o(f"  s_add_u32 s51, s50, 6400")
o(f"  s_add_u32 s55, s54, 3200")
o("  s_mov_b32 s58, 21400")
o("  s_mov_b32 s59, -49")
o("  v_cmp_gt_u32 vcc, 400, v0")
o("  s_waitcnt lgkmcnt(0)")
srd(28, 14, 15, E*4)
srd(32, 12, 13, E*4)
srd(36, 10, 11, E*2)
o("  s_and_saveexec_b64 s[62:63], vcc")
o("  s_cbranch_execz K1_P_L0")
vD, vS, vE = 8, 16, 24
for r in range(2):
    o(f"  buffer_load_dwordx4 v[{vD+4*r}:{vD+4*r+3}], v1, s[28:31], s{50+r} offen")
for r in range(2):
    o(f"  buffer_load_dwordx4 v[{vS+4*r}:{vS+4*r+3}], v1, s[32:35], s{50+r} offen")
for r in range(2):
    o(f"  buffer_load_dwordx2 v[{vE+2*r}:{vE+2*r+1}], v2, s[36:39], s{54+r} offen")
o("K1_P_L0:")
o(f"  s_mul_i32 s60, s2, {CH*8}")
o(f"  s_add_u32 s60, s60, {REC_OFF}")
o("  s_add_u32 s40, s24, s60")
o("  s_addc_u32 s41, s25, 0")
o("  s_and_b32 s41, s41, 0xffff")
o(f"  s_mov_b32 s42, {CH*8}")
o("  s_mov_b32 s43, 0x00020000")
srd_off(44, 24, 25, OFFT_OFF, 257*1024)
o("  v_mov_b32 v5, 1")
o("  s_mov_b32 s61, 0xffff0000")
o("  s_barrier")
vA, vR, vL = 28, 36, 44
o("  s_waitcnt vmcnt(4)")
stamp(1)
for k in range(8):
    o(f"  v_mul_u32_u24 v6, s58, v{vD+k}")
    o(f"  v_lshrrev_b32 v6, 20, v6")
    o(f"  v_mad_i32_i24 v{vL+2*k+1}, v6, s59, v{vD+k}")
    o(f"  v_and_b32 v7, 7, v6")
    o(f"  v_lshrrev_b32 v6, 3, v6")
    o(f"  v_lshl_or_b32 v6, v7, 5, v6")
    o(f"  v_lshlrev_b32 v{vA+k}, 2, v6")
    o(f"  ds_add_rtn_u32 v{vR+k}, v{vA+k}, v5 offset:{HIST}")
o("  s_waitcnt lgkmcnt(0)")
o("  s_barrier")
stamp(2)
o("  s_waitcnt vmcnt(0)")
for k in range(8):
    r, j = k >> 2, k & 3
    ereg = vE + 2*r + (j >> 1)
    if j & 1 == 0:
        o(f"  v_lshl_or_b32 v{vL+2*k}, v{ereg}, 16, v{vS+k}")
    else:
        o(f"  v_and_or_b32 v{vL+2*k}, v{ereg}, s61, v{vS+k}")
o("  s_mov_b64 exec, s[62:63]")
o("  v_cmp_gt_u32 vcc, 64, v0")
o("  s_and_saveexec_b64 s[64:65], vcc")
o("  s_cbranch_execz K1_P_SCANDONE")
o(f"  ds_read_b128 v[60:63], v1 offset:{HIST}")
o("  s_waitcnt lgkmcnt(0)")
o("  v_add_u32 v65, v60, v61")
o("  v_add_u32 v66, v65, v62")
o("  v_add_u32 v67, v66, v63")
o("  v_mov_b32 v68, v67")
wave_scan(68)
o("  v_sub_u32 v68, v68, v67")
o("  v_add_u32 v69, v68, v60")
o("  v_add_u32 v70, v68, v65")
o("  v_add_u32 v71, v68, v66")
o(f"  ds_write_b128 v1, v[68:71] offset:{OFFL}")
o("  v_lshlrev_b32 v64, 12, v0")
o("  s_lshl_b32 s66, s2, 2")
for j in range(4):
    o(f"  buffer_store_dword v{68+j}, v64, s[44:47], s66 offen offset:{j*1024}")
o(f"  v_mov_b32 v72, {CH}")
o(f"  v_mov_b32 v73, {256*1024}")
o("  buffer_store_dword v72, v73, s[44:47], s66 offen")
o("K1_P_SCANDONE:")
o("  s_mov_b64 exec, s[64:65]")
o("  v_cmp_gt_u32 vcc, 400, v0")
o("  s_and_saveexec_b64 s[62:63], vcc")
o("  s_waitcnt lgkmcnt(0)")
o("  s_barrier")
stamp(3)
for k in range(8):
    o(f"  ds_read_b32 v{vD+k}, v{vA+k} offset:{OFFL}")
o("  s_waitcnt lgkmcnt(0)")
for k in range(8):
    o(f"  v_add_u32 v6, v{vD+k}, v{vR+k}")
    o(f"  v_lshlrev_b32 v6, 3, v6")
    o(f"  ds_write_b64 v6, v[{vL+2*k}:{vL+2*k+1}] offset:{STG}")
o("  s_mov_b64 exec, s[62:63]")
o("  s_waitcnt lgkmcnt(0)")
o("  s_barrier")
stamp(4)
for i in range(4):
    o(f"  ds_read_b128 v[{8+4*i}:{8+4*i+3}], v1 offset:{STG+8192*i}")
o("  v_add_u32 v2, 0x2000, v1")
o("  v_add_u32 v3, 0x4000, v1")
o("  v_add_u32 v4, 0x6000, v1")
for i in range(4):
    o(f"  s_waitcnt lgkmcnt({3-i})")
    o(f"  buffer_store_dwordx4 v[{8+4*i}:{8+4*i+3}], v{1+i}, s[40:43], 0 offen")
if DBG:
    o("  s_waitcnt vmcnt(0)")
    stamp(5)
    o("  s_waitcnt lgkmcnt(0)")
    o("  s_cmp_lg_u32 s2, {}".format(7))
    o("  s_cbranch_scc1 K1_END")
    o("  v_cmp_eq_u32 vcc, 0, v0")
    o("  s_and_saveexec_b64 s[70:71], vcc")
    o("  s_cbranch_execz K1_END")
    o("  s_load_dwordx2 s[72:73], s[0:1], 64")
    o("  s_waitcnt lgkmcnt(0)")
    srd(76, 72, 73, 256)
    o("  v_mov_b32 v1, 0")
    for i in range(1, 5+1):
        o(f"  s_sub_u32 s73, s{80+2*i}, s80")
        o(f"  v_mov_b32 v2, s73")
        o(f"  buffer_store_dword v2, v1, s[76:79], 0 offen offset:{4*i}")
o("  s_endpgm")

o("K1_GEMM:")
o(f"  s_sub_u32 s3, s2, {PW}")
o("  v_lshrrev_b32 v1, 6, v0")
o("  s_nop 0")
o("  v_readfirstlane_b32 s5, v1")
o("  v_and_b32 v2, 63, v0")
o("  v_and_b32 v3, 31, v2")
o("  v_lshrrev_b32 v4, 5, v2")
o("  v_lshlrev_b32 v10, 4, v0")
o("  s_and_b32 s6, s5, 1")
o("  s_lshr_b32 s26, s5, 1")
o("  s_lshl_b32 s4, s3, 2")
o("  s_add_u32 s4, s4, s26")
o("  s_lshl_b32 s4, s4, 5")
o("  s_waitcnt lgkmcnt(0)")
srd(28, 20, 21, 128*128)
srd(32, 18, 19, 8192)
srd(36, 8, 9, N*128)
XF = 16
WT = 32
WF = 48
AC = 80
o("  s_mov_b32 s26, 8192")
o(f"  buffer_load_dwordx4 v[{WT}:{WT+3}], v10, s[28:31], s26 offen")
o(f"  buffer_load_dwordx4 v[{WT+4}:{WT+7}], v10, s[32:35], 0 offen")
o("  v_add_u32 v7, s4, v3")
o("  v_lshlrev_b32 v7, 7, v7")
o("  v_lshl_add_u32 v7, v4, 4, v7")
for ks in range(4):
    o(f"  buffer_load_dwordx4 v[{XF+ks*4}:{XF+ks*4+3}], v7, s[36:39], 0 offen offset:{ks*32}")
srd_off(40, 24, 25, T_OFF, ROWS*256)
o("  v_lshlrev_b32 v5, 10, v4")
o("  v_bfe_u32 v6, v2, 2, 2")
o("  v_lshl_add_u32 v5, v6, 7, v5")
o("  v_bfe_u32 v6, v2, 4, 1")
o("  v_lshl_add_u32 v5, v6, 5, v5")
o("  v_and_b32 v6, 3, v2")
o("  v_lshl_add_u32 v5, v6, 3, v5")
o("  s_lshl_b32 s26, s6, 6")
o("  v_add_u32 v5, s26, v5")
for i in range(32):
    o(f"  v_mov_b32 v{AC+i}, 0")
o("  v_lshl_add_u32 v9, v4, 2, s4")
o("  v_lshlrev_b32 v9, 8, v9")
o("  v_lshl_add_u32 v9, v3, 2, v9")
o("  s_lshl_b32 s26, s6, 7")
o("  v_add_u32 v9, s26, v9")
for q in range(4):
    o(f"  s_mov_b32 s{64+q}, {(8*q)*256}")
o("  v_mov_b32 v12, 0x477fe000")
o("  v_mov_b32 v11, 0xc77fe000")
o("  s_waitcnt vmcnt(4)")
for idx, off in enumerate((0, 8192)):
    o(f"  ds_write_b128 v10, v[{WT+4*idx}:{WT+4*idx+3}] offset:{off}")
o("  s_waitcnt lgkmcnt(0)")
o("  s_barrier")
for m in range(2):
    for ks in range(4):
        for h in range(2):
            f = WF+m*16+ks*4+2*h
            o(f"  ds_read_b64_tr_b16 v[{f}:{f+1}], v5 offset:{m*8192 + ks*2048 + h*512}")
o("  s_waitcnt vmcnt(0) lgkmcnt(0)")
stamp(1)
for m in range(2):
    for ks in range(4):
        a = XF+ks*4
        b = WF+m*16+ks*4
        c = AC+m*16
        o(f"  v_mfma_f32_32x32x16_bf16 v[{c}:{c+15}], v[{a}:{a+3}], v[{b}:{b+3}], v[{c}:{c+15}]")
o("  s_nop 15")
o("  s_nop 3")
stamp(2)
for i in range(16):
    a1 = AC+i
    a2 = AC+16+i
    o(f"  v_mul_f32 v13, {NLOG2E:#x}, v{a1}")
    o(f"  v_med3_f32 v13, v13, v11, v12")
    o(f"  v_cvt_f16_f32 v13, v13")
    o(f"  v_and_b32 v13, 0xffff, v13")
    o(f"  v_and_b32 v14, 0x7fffffff, v{a2}")
    o(f"  v_and_b32 v15, 0x80000000, v{a2}")
    o(f"  v_sub_u32 v14, v14, v13")
    o(f"  v_add_u32 v14, 0x8000, v14")
    o(f"  v_max_i32 v14, 0, v14")
    o(f"  v_min_i32 v14, 0x7f7fffff, v14")
    o(f"  v_and_b32 v14, 0xffff0000, v14")
    o(f"  v_or3_b32 v{a1}, v14, v15, v13")
    o(f"  buffer_store_dword v{a1}, v9, s[40:43], s{64+(i>>2)} offen offset:{(i&3)*256}")
if DBG:
    o("  s_waitcnt vmcnt(0)")
    stamp(3)
    o("  s_waitcnt lgkmcnt(0)")
    o("  s_cmp_lg_u32 s2, {}".format(PW+7))
    o("  s_cbranch_scc1 K1_END")
    o("  v_cmp_eq_u32 vcc, 0, v0")
    o("  s_and_saveexec_b64 s[70:71], vcc")
    o("  s_cbranch_execz K1_END")
    o("  s_load_dwordx2 s[72:73], s[0:1], 64")
    o("  s_waitcnt lgkmcnt(0)")
    srd(76, 72, 73, 256)
    o("  v_mov_b32 v1, 64")
    for i in range(1, 3+1):
        o(f"  s_sub_u32 s73, s{80+2*i}, s80")
        o(f"  v_mov_b32 v2, s73")
        o(f"  buffer_store_dword v2, v1, s[76:79], 0 offen offset:{4*i}")
o("K1_END:")
o("  s_endpgm")

L_HIST = 0
L_GOFF = 256
L_MISC = 512
L_HN = 576
L_HEAD = 1024
L_ACC = L_HEAD + 16*256
L_A = L_ACC + BN*256
L_U = L_A + 64*256
L_SORT = L_U + 64*256
L_X = 150 * 1024
L_W = L_HEAD
NIT = KSEG // 4
o(".globl mpnn_k2_kernel")
o(".p2align 8")
o(".type mpnn_k2_kernel,@function")
o("mpnn_k2_kernel:")
o(f"  s_cmp_ge_u32 s2, {NB}")
o("  s_cbranch_scc1 K2_END")
stamp(0)
o("  s_load_dwordx4 s[8:11], s[0:1], 48")
o("  s_load_dwordx2 s[12:13], s[0:1], 64")
o("  s_load_dwordx2 s[14:15], s[0:1], 32")
o("  s_load_dwordx2 s[16:17], s[0:1], 0")
o("  s_load_dwordx2 s[24:25], s[0:1], 72")
o("  v_lshrrev_b32 v1, 6, v0")
o("  v_and_b32 v2, 63, v0")
o("  v_readfirstlane_b32 s5, v1")
o("  v_lshlrev_b32 v3, 4, v0")
o("  v_lshrrev_b32 v4, 3, v0")
o("  v_and_b32 v5, 7, v0")
o("  v_lshlrev_b32 v5, 1, v5")
o("  v_and_b32 v6, 15, v2")
o("  v_lshlrev_b32 v6, 4, v6")
o("  v_lshlrev_b32 v7, 2, v4")
o("  s_and_b32 s7, s2, 7")
o("  s_lshl_b32 s7, s7, 5")
o("  s_lshr_b32 s58, s2, 3")
o("  s_or_b32 s7, s7, s58")
o("  s_lshl_b32 s7, s7, 10")
o(f"  s_mul_i32 s6, s2, {BN*256}")
o("  s_waitcnt lgkmcnt(0)")
srd(48, 8, 9, 129*128)
srd(44, 14, 15, 8192)
srd(40, 16, 17, N*128)
srd_off(28, 24, 25, OFFT_OFF, 257*1024)
o("  buffer_load_dword v8, v7, s[28:31], s7 offen")
o("  buffer_load_dword v9, v7, s[28:31], s7 offen offset:1024")
o("  buffer_load_dword v24, v7, s[28:31], s7 offen offset:512")
o("  buffer_load_dword v25, v7, s[28:31], s7 offen offset:1536")
srd_off(32, 24, 25, REC_OFF, PW*CH*8)
srd_off(36, 24, 25, T_OFF, ROWS)
o("  s_or_b32 s37, s37, 0x01000000")
srd(52, 10, 11, N*128)
o("  v_mov_b32 v120, 0")
o("  v_mov_b32 v121, 0")
o("  v_mov_b32 v122, 0")
o("  v_mov_b32 v123, 0")
o("  s_cmp_lg_u32 s5, 0")
o("  s_cbranch_scc1 K2_Z2")
o(f"  ds_write_b128 v3, v[120:123] offset:0")
o("K2_Z2:")
o("  v_lshrrev_b32 v10, 4, v2")
o("  v_and_b32 v11, 1, v10")
o("  v_lshlrev_b32 v11, 3, v11")
o("  v_lshrrev_b32 v10, 1, v10")
o("  v_lshl_add_u32 v11, v10, 2, v11")
o("  v_add_u32 v36, v11, v6")
o("  v_mov_b32 v27, 1")
o("  v_mov_b32 v32, 0x3c00")
o("  s_mov_b32 s60, 0")
o(f"  v_mov_b32 v11, {CH*8}")
o("  v_add_u32 v10, 128, v4")
o("  s_waitcnt vmcnt(0)")
stamp(1)
o("  v_sub_u32 v9, v9, v8")
o("  v_sub_u32 v25, v25, v24")
o(f"  v_cmp_gt_u32 vcc, {PW}, v10")
o("  v_add_u32 v8, v8, v5")
o("  v_add_u32 v24, v24, v5")
o("  v_cndmask_b32 v25, 0, v25, vcc")
o(f"  v_min_u32 v9, {CH}, v9")
o(f"  v_min_u32 v25, {CH}, v25")
o("  v_lshlrev_b32 v8, 3, v8")
o("  v_lshlrev_b32 v24, 3, v24")
o("  v_mad_u32_u24 v8, v4, v11, v8")
o("  v_mad_u32_u24 v24, v10, v11, v24")
o("  v_max_u32 v23, v9, v25")
o("  v_sub_u32 v26, v9, v5")
o("  v_sub_u32 v25, v25, v5")
RL = 40
RK = 64
REM = (26, 25)
ADR = (8, 24)
NI = KSEG // 16
o("K2_ROUND:")
for p in range(2):
    for it in range(NI):
        q = p*NI + it
        o(f"  v_cmpx_lt_i32 vcc, {16*it}, v{REM[p]}")
        o(f"  s_cbranch_execz K2_LD_DONE{p}")
        o(f"  buffer_load_dwordx4 v[{RL+4*q}:{RL+4*q+3}], v{ADR[p]}, s[32:35], 0 offen offset:{128*it}")
    o(f"K2_LD_DONE{p}:")
    o("  s_mov_b64 exec, -1")
o("  s_cmp_lg_u32 s60, 0")
o("  s_cbranch_scc1 K2_SETUP_SKIP")
o("  v_lshrrev_b32 v10, 1, v6")
o(f"  v_add_u32 v10, {128*128}, v10")
o("  buffer_load_dwordx2 v[20:21], v10, s[48:51], 0 offen")
o("  v_and_b32 v10, 0x1ff0, v3")
o("  s_cmp_ge_u32 s5, 8")
o("  s_cbranch_scc1 K2_W1")
o("  buffer_load_dwordx4 v[12:15], v10, s[48:51], 0 offen")
o(f"  s_mul_i32 s59, s2, {BN*128}")
o("  buffer_load_dwordx4 v[88:91], v3, s[40:43], s59 offen")
o("  s_waitcnt lgkmcnt(0)")
o("  s_barrier")
stamp(7)
o("  s_waitcnt vmcnt(3)")
o("  s_branch K2_W2")
o("K2_W1:")
o("  buffer_load_dwordx4 v[12:15], v10, s[44:47], 0 offen")
o("  s_waitcnt lgkmcnt(0)")
o("  s_barrier")
stamp(7)
o("  s_waitcnt vmcnt(2)")
o("K2_W2:")
o(f"  v_mov_b32 v11, {L_MISC}")
o("  ds_max_u32 v11, v23")
o("  s_branch K2_SETUP_DONE")
o("K2_SETUP_SKIP:")
o("  s_waitcnt lgkmcnt(0)")
o("  s_barrier")
o("  s_waitcnt vmcnt(0)")
o("K2_SETUP_DONE:")
stamp(2)
def rec_loop(tag, body):
    for p in range(2):
        for it in range(NI):
            for h in range(2):
                q = p*NI + it
                o(f"  v_cmpx_lt_i32 vcc, {16*it+h}, v{REM[p]}")
                o(f"  s_cbranch_execz K2_{tag}_DONE{p}")
                body(RL+4*q+2*h, 2*q+h)
        o(f"K2_{tag}_DONE{p}:")
        o("  s_mov_b64 exec, -1")
def b_at(r, i):
    o(f"  v_lshlrev_b32 v{r+1}, 2, v{r+1}")
    o(f"  ds_add_rtn_u32 v{RK+i}, v{r+1}, v27 offset:{L_HIST}")
rec_loop("AT", b_at)
o("  s_waitcnt lgkmcnt(0)")
o("  s_barrier")
stamp(8)
o("  s_cmp_lg_u32 s60, 0")
o("  s_cbranch_scc1 K2_PF_SKIP")
o("  s_lshr_b32 s58, s2, 3")
o(f"  s_mul_i32 s58, s58, {392*256}")
for i in range(7 if EXP == "prefetch" else 0):
    o(f"  buffer_load_dwordx4 v[104:107], v3, s[36:39], s58 offen")
    o(f"  s_add_u32 s58, s58, 16384")

o("K2_PF_SKIP:")
o("  v_lshlrev_b32 v11, 2, v2")
o(f"  ds_read_b32 v37, v11 offset:{L_HIST}")
o(f"  v_cmp_gt_u32 s[56:57], {BN}, v2")
o("  s_waitcnt lgkmcnt(0)")
o("  v_add_u32 v34, 3, v37")
o("  v_and_b32 v34, -4, v34")
o("  v_max_u32 v34, 4, v34")
o("  v_cndmask_b32 v34, 0, v34, s[56:57]")
o("  v_mov_b32 v35, v34")
wave_scan(35)
o("  v_readlane_b32 s61, v35, 63")
o("  v_sub_u32 v35, v35, v34")
o("  s_add_u32 s62, s61, 15")
o("  s_and_b32 s62, s62, -16")
o("  v_mov_b32 v33, s62")
o("  s_nop 1")
o("  v_cndmask_b32 v33, v33, v35, s[56:57]")
o("  s_cmp_lg_u32 s5, 0")
o("  s_cbranch_scc1 K2_PAD_DONE")
o(f"  v_mov_b32 v38, {N}")
o("  v_mov_b32 v39, 0")
o("  v_add_u32 v10, v35, v37")
o("  v_lshlrev_b32 v10, 3, v10")
o("  v_sub_u32 v34, v34, v37")
for j in range(4):
    o(f"  v_cmpx_lt_u32 vcc, {j}, v34")
    o(f"  ds_write_b64 v10, v[38:39] offset:{L_SORT+8*j}")
o("  s_mov_b64 exec, -1")
o("  v_add_u32 v10, s61, v2")
o("  v_lshlrev_b32 v10, 3, v10")
o("  v_cmpx_gt_u32 vcc, 16, v2")
o(f"  ds_write_b64 v10, v[38:39] offset:{L_SORT}")
o("  s_mov_b64 exec, -1")
o("K2_PAD_DONE:")
for p in range(2):
    for it in range(NI):
        for h in range(2):
            q = p*NI + it
            r = RL+4*q+2*h
            o(f"  v_cmp_lt_i32 vcc, {16*it+h}, v{REM[p]}")
            o(f"  s_cbranch_vccz K2_SC1_DONE{p}")
            o(f"  ds_bpermute_b32 v{76+2*q+h}, v{r+1}, v33")
    o(f"K2_SC1_DONE{p}:")
o("  s_waitcnt lgkmcnt(0)")
def b_wr(r, i):
    o(f"  v_add_u32 v11, v{76+i}, v{RK+i}")
    o(f"  v_lshlrev_b32 v11, 3, v11")
    o(f"  v_and_b32 v{r+1}, 0xffff0000, v{r}")
    o(f"  v_and_b32 v{r}, 0x3fff, v{r}")
    o(f"  ds_write_b64 v11, v[{r}:{r+1}] offset:{L_SORT}")
rec_loop("SC2", b_wr)
o("  s_cmp_lg_u32 s60, 0")
o("  s_cbranch_scc1 K2_WST_SKIP")
o("  s_waitcnt vmcnt(0)")
o(f"  ds_write_b128 v3, v[12:15] offset:{L_W}")
o("  s_cmp_ge_u32 s5, 8")
o("  s_cbranch_scc1 K2_XST")
o("  v_lshrrev_b32 v10, 3, v0")
o("  v_lshl_add_u32 v10, v10, 4, v3")
o(f"  v_add_u32 v10, {L_X}, v10")
o("  ds_write_b128 v10, v[88:91]")
o("K2_XST:")
o("  v_lshlrev_b32 v28, 16, v20")
o("  v_and_b32 v29, 0xffff0000, v20")
o("  v_lshlrev_b32 v30, 16, v21")
o("  v_and_b32 v31, 0xffff0000, v21")
for j in range(4):
    o(f"  v_mul_f32 v{28+j}, {NLOG2E:#x}, v{28+j}")
o("K2_WST_SKIP:")
stamp(9)
o("  v_readlane_b32 s62, v33, 49")
o("  s_lshr_b32 s63, s62, 2")
o("  s_mul_i32 s64, s63, s5")
o("  s_lshr_b32 s64, s64, 4")
o("  s_add_u32 s65, s5, 1")
o("  s_mul_i32 s65, s63, s65")
o("  s_lshr_b32 s65, s65, 4")
o("  s_lshl_b32 s66, s64, 2")
o("  s_lshl_b32 s67, s65, 2")
o(f"  v_cmp_gt_u32 s[56:57], {BN}, v2")
o("  v_cmp_ge_u32 vcc, s66, v33")
o("  s_and_b64 vcc, vcc, s[56:57]")
o("  s_bcnt1_i32_b64 s68, vcc")
o("  s_sub_u32 s68, s68, 1")
o("  s_add_u32 s69, s68, 1")
o("  v_readlane_b32 s70, v33, s69")
o("  v_readlane_b32 s72, v33, s68")
o("  s_cmp_lg_u32 s72, s66")
o("  s_cselect_b32 s73, 1, 0")
o("  s_cmp_ge_u32 s64, s65")
o("  s_cselect_b32 s73, 0, s73")
o("  s_cmp_lg_u32 s73, 0")
o("  s_cselect_b32 s74, s68, -1")
o("  v_mov_b32 v11, s74")
o("  s_lshl_b32 s74, s5, 2")
o("  v_mov_b32 v10, s74")
o(f"  ds_write_b32 v10, v11 offset:{L_HN}")
o("  s_waitcnt lgkmcnt(0)")
o("  s_barrier")
stamp(3)
if DBG:
    pass
AV = 40
AC2 = 44
RB = 48
EBL = [12,13,14,15, 20,21,22,23, 4,5,9,10]
WB = 72
TT = 120
NBUF = int(os.environ.get("NBUF","2"))
VRA = 34
VAA = 35
VRB = 37
o("  v_lshrrev_b32 v11, 4, v2")
o("  v_lshlrev_b32 v11, 3, v11")
o("  s_lshl_b32 s71, s66, 3")
o(f"  v_add_u32 v{VRA}, s71, v11")
o("  v_mov_b32 v38, 1.0")
o("  v_mov_b32 v39, 1.0")
R = int(os.environ.get("RING","4"))
for i in range(R):
    o(f"  v_mov_b32 v{RB+2*i+1}, v6")
def issue1(j, ahead, off):
    o(f"  s_add_u32 s78, s66, {4*ahead}")
    o("  s_cmp_lt_u32 s78, s67")
    o(f"  s_cselect_b32 s38, {ROWS}, 0")
    r = RB+2*j
    if EXP == "samerow":
        o(f"  v_mov_b32 v{r}, 0")
    o(f"  buffer_load_dwordx4 v[{WB+4*j}:{WB+4*j+3}], v[{r}:{r+1}], s[36:39], 0 idxen offen")
    o(f"  ds_read_b32 v{r}, v{VRB} offset:{L_SORT+off}")
uid = [0]
def compute1(i, off, fast=False):
    e = EBL[i]
    ep, es = e & ~1, e & 1
    w = WB+4*i
    t = TT + (i & 1)*4
    o(f"  s_waitcnt vmcnt({R-1})")
    if fast:
        for j in range(4):
            o(f"  v_fma_mix_f32 v{t+j}, v{e}, v{28+j}, v{w+j} op_sel_hi:[0,0,1]")
        o(f"  ds_read_b32 v{e}, v{VRA} offset:{L_SORT+off+4}")
    else:
        for j in (0, 2):
            o(f"  v_pk_fma_f32 v[{t+j}:{t+j+1}], v[{ep}:{ep+1}], v[{28+j}:{29+j}], v[{AV+j}:{AV+j+1}] op_sel:[{es},0,0] op_sel_hi:[{es},1,1]")
        o(f"  ds_read_b32 v{e}, v{VRA} offset:{L_SORT+off+4}")
        for j in range(4):
            o(f"  v_dot2_f32_f16 v{t+j}, v{w+j}, v32, v{t+j}")
    for j in range(4):
        o(f"  v_exp_f32 v{t+j}, v{t+j}")
    o("  s_add_u32 s66, s66, 4")
    for j in (0, 2):
        if fast:
            o(f"  v_pk_fma_f32 v[{t+j}:{t+j+1}], v[{t+j}:{t+j+1}], v[{AV+j}:{AV+j+1}], v[38:39]")
        else:
            o(f"  v_pk_add_f32 v[{t+j}:{t+j+1}], v[{t+j}:{t+j+1}], v[38:39]")
    for j in range(4):
        o(f"  v_rcp_f32 v{t+j}, v{t+j}")
    o("  s_cmp_lg_u32 s66, s70")
    for j in (0, 2):
        o(f"  v_pk_fma_f32 v[{AC2+j}:{AC2+j+1}], v[{t+j}:{t+j+1}], v[{w+j}:{w+j+1}], v[{AC2+j}:{AC2+j+1}]")
    uid[0] += 1
    u = uid[0]
    o(f"  s_cbranch_scc1 K2_NF{u}")
    o("  s_getpc_b64 s[76:77]")
    o("  s_add_u32 s76, s76, 12")
    o("  s_addc_u32 s77, s77, 0")
    o("  s_branch K2_FLUSH")
    o(f"K2_NF{u}:")
for i in range(R):
    o(f"  ds_read_b32 v{RB+2*i}, v{VRA} offset:{L_SORT+32*i}")
    o(f"  ds_read_b32 v{EBL[i]}, v{VRA} offset:{L_SORT+32*i+4}")
o(f"  v_add_u32 v{VRA}, {32*R}, v{VRA}")
o(f"  v_mov_b32 v{VRB}, v{VRA}")
o("  s_waitcnt lgkmcnt(0)")
for i in range(R-1):
    issue1(i, i, 32*i)
o(f"  v_add_u32 v{VRB}, {32*(R-1)}, v{VRB}")
o("  s_cmp_lg_u32 s60, 0")
o("  s_cbranch_scc1 K2_MM_SKIP")
o("  s_cmp_ge_u32 s5, 8")
o("  s_cbranch_scc1 K2_MM_DONE")
ACM = 104
o("  v_lshrrev_b32 v1, 5, v2")
o("  v_lshlrev_b32 v7, 10, v1")
o("  v_bfe_u32 v11, v2, 2, 2")
o("  v_lshl_add_u32 v7, v11, 7, v7")
o("  v_bfe_u32 v11, v2, 4, 1")
o("  v_lshl_add_u32 v7, v11, 5, v7")
o("  v_and_b32 v11, 3, v2")
o("  v_lshl_add_u32 v7, v11, 3, v7")
o("  s_and_b32 s58, s5, 1")
o("  s_bfe_u32 s59, s5, 0x10001")
o("  s_lshl_b32 s78, s58, 6")
o("  s_lshl_b32 s79, s59, 13")
o("  s_add_u32 s78, s78, s79")
o("  v_add_u32 v7, s78, v7")
o("  s_lshr_b32 s78, s5, 2")
o(f"  s_mul_i32 s78, s78, {32*144}")
o(f"  s_add_u32 s78, s78, {L_X}")
o("  v_and_b32 v11, 31, v2")
o("  v_mul_u32_u24 v11, 144, v11")
o("  v_lshl_add_u32 v11, v1, 4, v11")
o("  v_add_u32 v11, s78, v11")
for i in range(16):
    o(f"  v_mov_b32 v{ACM+i}, 0")
for half in range(2):
    for k2 in range(2):
        ks = half*2 + k2
        for h in range(2):
            f = 40+k2*4+2*h
            o(f"  ds_read_b64_tr_b16 v[{f}:{f+1}], v7 offset:{L_W + ks*2048 + h*512}")
        o(f"  ds_read_b128 v[{120+k2*4}:{123+k2*4}], v11 offset:{ks*32}")
    o("  s_waitcnt lgkmcnt(0)")
    for k2 in range(2):
        o(f"  v_mfma_f32_32x32x16_bf16 v[{ACM}:{ACM+15}], v[{120+k2*4}:{123+k2*4}], v[{40+k2*4}:{43+k2*4}], v[{ACM}:{ACM+15}]")
    o("  s_nop 7")
o("  s_lshr_b32 s78, s5, 2")
o("  s_lshl_b32 s78, s78, 13")
o("  s_lshl_b32 s79, s58, 7")
o("  s_add_u32 s78, s78, s79")
o("  s_lshl_b32 s79, s59, 14")
o("  s_add_u32 s78, s78, s79")
o("  v_lshlrev_b32 v7, 10, v1")
o("  v_and_b32 v11, 31, v2")
o("  v_lshl_add_u32 v7, v11, 2, v7")
o("  v_add_u32 v7, s78, v7")
o(f"  s_cmp_eq_u32 s59, 0")
o(f"  s_cselect_b32 s79, {NLOG2E:#x}, 1.0")
o("  v_mov_b32 v11, s79")
o("  s_nop 7")
for i in range(16):
    o(f"  v_mul_f32 v{ACM+i}, v{ACM+i}, v11")
    o(f"  ds_write_b32 v7, v{ACM+i} offset:{L_A + ((i&3) + 8*(i>>2))*256}")
o("  s_cmp_lg_u32 s59, 0")
o("  s_cbranch_scc1 K2_MM_DONE")
o(f"  v_and_b32 v11, 0x7fffffff, v{ACM}")
for i in range(1, 16):
    o(f"  v_and_b32 v1, 0x7fffffff, v{ACM+i}")
    o("  v_max_u32 v11, v11, v1")
o(f"  v_mov_b32 v1, {L_MISC+4}")
o("  ds_max_u32 v1, v11")
o("K2_MM_DONE:")
o("  s_waitcnt lgkmcnt(0)")
o("  s_barrier")
o(f"  v_mov_b32 v1, {L_MISC+4}")
o("  ds_read_b32 v11, v1")
o("  s_waitcnt lgkmcnt(0)")
o("  v_readfirstlane_b32 s75, v11")
o("  s_cmp_le_u32 s75, 0x42700000")
o("  s_cselect_b32 s75, 1, 0")
if EXP == "safe":
    o("  s_mov_b32 s75, 0")
o("K2_MM_SKIP:")
o("  s_cmp_ge_u32 s64, s65")
o("  s_cbranch_scc1 K2_NOFINAL")
o("  s_lshl_b32 s71, s68, 8")
o(f"  v_add_u32 v{VAA}, s71, v6")
o(f"  ds_read_b128 v[{AV}:{AV+3}], v{VAA} offset:{L_A}")
for j in range(4):
    o(f"  v_mov_b32 v{AC2+j}, 0")
o("  s_setprio 3")
pid = [0]
def prio_update():
    if not PRIO:
        return
    pid[0] += 1
    u = pid[0]
    o("  s_sub_u32 s78, s67, s66")
    o(f"  s_cmp_gt_u32 s78, {16*P3}")
    o(f"  s_cbranch_scc1 K2_PD{u}")
    o(f"  s_cmp_gt_u32 s78, {16*P2}")
    o(f"  s_cbranch_scc1 K2_PA{u}")
    o(f"  s_cmp_gt_u32 s78, {16*P1}")
    o(f"  s_cbranch_scc1 K2_PB{u}")
    o("  s_setprio 0")
    o(f"  s_branch K2_PD{u}")
    o(f"K2_PA{u}:")
    o("  s_setprio 2")
    o(f"  s_branch K2_PD{u}")
    o(f"K2_PB{u}:")
    o("  s_setprio 1")
    o(f"K2_PD{u}:")
o("  s_waitcnt lgkmcnt(0)")
o("  s_cmp_eq_u32 s75, 0")
o("  s_cbranch_scc1 K2_LOOP")
for j in range(4):
    o(f"  v_exp_f32 v{AV+j}, v{AV+j}")
for fast in (True, False):
    lab = "K2_LOOPF" if fast else "K2_LOOP"
    o(f"{lab}:")
    for i in range(R):
        o("  s_waitcnt lgkmcnt(2)")
        issue1((i - 1) % R, R-1, 32*i)
        compute1(i, 32*i, fast)
        o("  s_cmp_ge_u32 s66, s67")
        o("  s_cbranch_scc1 K2_LOOP_EXIT")
    o(f"  v_add_u32 v{VRA}, {32*R}, v{VRA}")
    o(f"  v_add_u32 v{VRB}, {32*R}, v{VRB}")
    prio_update()
    o(f"  s_branch {lab}")
o("K2_LOOP_EXIT:")
o("  s_setprio 0")
o("  v_readlane_b32 s72, v33, s68")
o("  s_cmp_ge_u32 s72, s67")
o("  s_cbranch_scc1 K2_NOFINAL")
o("  s_getpc_b64 s[76:77]")
o("  s_add_u32 s76, s76, 12")
o("  s_addc_u32 s77, s77, 0")
o("  s_branch K2_FLUSH")
o("K2_NOFINAL:")
o("  s_waitcnt vmcnt(0) lgkmcnt(0)")
o("K2_MAIN_DONE:")
stamp(4)
o(f"  v_mov_b32 v11, {L_MISC}")
o("  ds_read_b32 v34, v11")
o("  s_barrier")
o("  v_lshlrev_b32 v10, 2, v2")
o(f"  ds_read_b32 v35, v10 offset:{L_HN}")
o(f"  ds_read_b32 v11, v10 offset:{L_HN-4}")
o("  s_lshl_b32 s71, s5, 8")
o("  v_add_u32 v20, s71, v36")
o(f"  ds_read_b32 v21, v20 offset:{L_HEAD}")
o("  s_waitcnt lgkmcnt(0)")
o("  v_readfirstlane_b32 s61, v34")
o(f"  s_min_u32 s61, s61, {CH}")
o("  v_cmp_eq_u32 vcc, v35, v11")
o("  v_cmp_ne_u32 s[56:57], -1, v35")
o("  s_and_b64 vcc, vcc, s[56:57]")
o("  s_and_b32 s72, vcc_lo, 0xfffe")
o("  s_cmp_lg_u32 s72, 0")
o("  s_cbranch_scc1 K2_CB_SLOW")
o("  s_cmp_lt_u32 s63, 16")
o("  s_cbranch_scc1 K2_CB_SLOW")
o("  v_readlane_b32 s72, v35, s5")
o("  s_cmp_eq_u32 s72, -1")
o("  s_cbranch_scc1 K2_CB_F1")
o("  s_lshl_b32 s72, s72, 8")
o("  v_add_u32 v20, s72, v36")
o(f"  ds_read_b32 v22, v20 offset:{L_ACC}")
o("  s_waitcnt lgkmcnt(0)")
o("  v_add_f32 v22, v22, v21")
o(f"  ds_write_b32 v20, v22 offset:{L_ACC}")
o("  s_waitcnt lgkmcnt(0)")
o("K2_CB_F1:")
o("  s_barrier")
o(f"  ds_read_b128 v[12:15], v3 offset:{L_ACC}")
o(f"  ds_read_b128 v[16:19], v3 offset:{L_U}")
o("  s_waitcnt lgkmcnt(0)")
o("  s_branch K2_CB_DONE")
o("K2_CB_SLOW:")
o(f"  ds_read_b128 v[12:15], v3 offset:{L_ACC}")
o(f"  ds_read_b128 v[16:19], v3 offset:{L_U}")
o("  v_lshrrev_b32 v10, 4, v0")
o("  s_waitcnt lgkmcnt(0)")
for w in range(16):
    o(f"  v_readlane_b32 s72, v35, {w}")
    o("  s_nop 1")
    o("  v_cmpx_eq_u32 vcc, s72, v10")
    o(f"  s_cbranch_execz K2_CB{w}")
    o(f"  ds_read_b128 v[20:23], v6 offset:{L_HEAD+256*w}")
    o("  s_waitcnt lgkmcnt(0)")
    for j in range(4):
        o(f"  v_add_f32 v{12+j}, v{12+j}, v{20+j}")
    o(f"K2_CB{w}:")
    o("  s_mov_b64 exec, -1")
o("K2_CB_DONE:")
o(f"  s_add_u32 s60, s60, {KSEG}")
o("  s_cmp_ge_u32 s60, s61")
o("  s_cbranch_scc1 K2_FINAL")
o("  v_cmp_gt_u32 vcc, 784, v0")
o("  s_and_saveexec_b64 s[56:57], vcc")
o("  s_cbranch_execz K2_NR0")
o(f"  ds_write_b128 v3, v[12:15] offset:{L_ACC}")
o("K2_NR0:")
o("  s_mov_b64 exec, s[56:57]")
o("  s_cmp_lg_u32 s5, 0")
o("  s_cbranch_scc1 K2_NR1")
o("  v_lshlrev_b32 v11, 2, v2")
o("  v_mov_b32 v34, 0")
o(f"  ds_write_b32 v11, v34 offset:{L_HIST}")
o("K2_NR1:")
o(f"  v_subrev_u32 v26, {KSEG}, v26")
o(f"  v_subrev_u32 v25, {KSEG}, v25")
o(f"  v_add_u32 v8, {KSEG*8}, v8")
o(f"  v_add_u32 v24, {KSEG*8}, v24")
o("  s_branch K2_ROUND")
o("K2_FINAL:")
stamp(5)
if DBG:
    pass
o("  v_cmp_gt_u32 vcc, 784, v0")
o("  s_and_saveexec_b64 s[56:57], vcc")
o("  s_cbranch_execz K2_FIN2")
o("  v_lshlrev_b32 v11, 3, v0")
o(f"  s_mul_i32 s6, s2, {BN*128}")
for j in range(4):
    o(f"  v_add_f32 v{12+j}, v{12+j}, v{16+j}")
for j in range(4):
    o(f"  v_mul_f32 v{20+j}, {NLOG2E:#x}, v{12+j}")
for j in range(4):
    o(f"  v_exp_f32 v{20+j}, v{20+j}")
for j in range(4):
    o(f"  v_add_f32 v{20+j}, 1.0, v{20+j}")
for j in range(4):
    o(f"  v_rcp_f32 v{20+j}, v{20+j}")
o("  s_nop 0")
for j in range(4):
    o(f"  v_mul_f32 v{12+j}, v{12+j}, v{20+j}")
o("  v_cvt_pk_bf16_f32 v12, v12, v13")
o("  v_cvt_pk_bf16_f32 v13, v14, v15")
o("  buffer_store_dwordx2 v[12:13], v11, s[52:55], s6 offen")
o("K2_FIN2:")
o("  s_mov_b64 exec, -1")
if DBG:
    stamp(6)
    o("  s_waitcnt lgkmcnt(0)")
    o("  s_cmp_lg_u32 s2, 5")
    o("  s_cbranch_scc1 K2_END")
    o("  s_lshl_b32 s72, s5, 4")
    srd(76, 12, 13, 256)
    o("  v_mov_b32 v1, s72")
    for n, i in enumerate(STAMPS):
        o(f"  s_sub_u32 s73, s{80+2*i}, s80")
        o(f"  v_mov_b32 v2, s73")
        o(f"  buffer_store_dword v2, v1, s[76:79], 0 offen offset:{4*n}")
o("K2_END:")
o("  s_endpgm")
o("K2_FLUSH:")
o("  s_nop 1")
o(f"  v_permlane32_swap_b32 v{AC2}, v{AC2+1}")
o(f"  v_permlane32_swap_b32 v{AC2+2}, v{AC2+3}")
o("  s_lshl_b32 s71, s68, 8")
o(f"  v_add_u32 v{VAA}, s71, v6")
o(f"  v_add_f32 v{AC2}, v{AC2}, v{AC2+1}")
o(f"  v_add_f32 v{AC2+2}, v{AC2+2}, v{AC2+3}")
o(f"  ds_read_b128 v[{AV}:{AV+3}], v{VAA} offset:{L_A+256}")
o(f"  v_add_u32 v{VAA}, s71, v36")
o(f"  v_permlane16_swap_b32 v{AC2}, v{AC2+2}")
o("  s_cmp_lg_u32 s73, 0")
o("  s_cbranch_scc1 K2_FL_HEAD")
o(f"  v_add_f32 v{AC2}, v{AC2}, v{AC2+2}")
o("  s_cmp_eq_u32 s60, 0")
o("  s_cbranch_scc1 K2_FL_W")
o(f"  ds_read_b32 v{AC2+1}, v{VAA} offset:{L_ACC}")
o("  s_waitcnt lgkmcnt(0)")
o(f"  v_add_f32 v{AC2}, v{AC2}, v{AC2+1}")
o("K2_FL_W:")
o(f"  ds_write_b32 v{VAA}, v{AC2} offset:{L_ACC}")
o("  s_branch K2_FL_C")
o("K2_FL_HEAD:")
o(f"  v_add_f32 v{AC2}, v{AC2}, v{AC2+2}")
o("  s_lshl_b32 s71, s5, 8")
o(f"  v_add_u32 v{VAA}, s71, v36")
o(f"  ds_write_b32 v{VAA}, v{AC2} offset:{L_HEAD}")
o("  s_mov_b32 s73, 0")
o("K2_FL_C:")
o("  s_add_u32 s68, s68, 1")
o("  s_add_u32 s69, s68, 1")
o("  v_readlane_b32 s70, v33, s69")
o("  s_waitcnt lgkmcnt(0)")
o("  s_cmp_eq_u32 s75, 0")
o("  s_cbranch_scc1 K2_FL_S")
for j in range(4):
    o(f"  v_exp_f32 v{AV+j}, v{AV+j}")
o("K2_FL_S:")
for j in range(4):
    o(f"  v_mov_b32 v{AC2+j}, 0")
o("  s_setpc_b64 s[76:77]")

o('.section .rodata,"a"')
for name, vg in (("mpnn_k1_kernel", 112), ("mpnn_k2_kernel", 128)):
    o(".p2align 6")
    o(f".amdhsa_kernel {name}")
    o(f"  .amdhsa_next_free_vgpr {vg}")
    o("  .amdhsa_next_free_sgpr 102")
    o(f"  .amdhsa_accum_offset {vg}")
    o("  .amdhsa_group_segment_fixed_size 0")
    o("  .amdhsa_kernarg_size 80")
    o("  .amdhsa_user_sgpr_count 2")
    o("  .amdhsa_user_sgpr_kernarg_segment_ptr 1")
    o("  .amdhsa_system_sgpr_workgroup_id_x 1")
    o(".end_amdhsa_kernel")

import re
_i = out.index("mpnn_k2_kernel:")
for _k in range(_i):
    if out[_k].lstrip().startswith("buffer_store_dword"):
        out[_k] += " sc1"
open(sys.argv[1] if len(sys.argv) > 1 else "standalone__edge_featured_mpnn_egc__graph.s", "w").write("\n".join(out) + "\n")
```
